```python
import torch

def _softmax(x, axis=-1):
    return torch.softmax(x, dim=axis)
def _gelu(x):
    return torch.nn.functional.gelu(x, approximate="tanh")
def _silu(x):
    return torch.nn.functional.silu(x)
def _sigmoid(x):
    return torch.sigmoid(x)
def _layernorm(x, axis=-1, eps=1e-5):
    m = x.mean(dim=axis, keepdim=True)
    v = x.var(dim=axis, keepdim=True, unbiased=False)
    return (x - m) / torch.sqrt(v + eps)
def _scatter_add(tgt, idx, src, axis=0):
    return tgt.clone().index_add_(axis, idx, src)
def _segment_sum(src, seg, n):
    out = torch.zeros((n,) + src.shape[1:], dtype=src.dtype)
    return out.index_add_(0, seg, src)
def _pad(x, pw):
    flat = tuple(v for pair in reversed(pw) for v in pair)
    return torch.nn.functional.pad(x, flat)

kernel_name = 'recurrent_scan__mha_block_cached__glu_gated_swiglu__prompt'

def setup_inputs():

    _w = (lambda a: (lambda t: t.to(torch.bfloat16) if t.is_floating_point() else t)(torch.as_tensor(a)))
    def _A_setup():
        B, Sq, D = 1, 2048, 640
        H, Sk, Dh = 32, 2048, 192
        return {
            "x": _w((lambda *s: torch.randn(*s, dtype=torch.bfloat16) * 0.05)(B, Sq, D)),
            "k_cache": _w((lambda *s: torch.randn(*s, dtype=torch.bfloat16) * 1.6)(B, H, Sk, Dh)),
            "v_cache": _w((lambda *s: torch.randn(*s, dtype=torch.bfloat16) * 1.6)(B, H, Sk, Dh)),
            "wq": _w((lambda *s: torch.randn(*s, dtype=torch.bfloat16) * 1.6)(D, H * Dh) * (D ** -0.5)),
            "wo": _w((lambda *s: torch.randn(*s, dtype=torch.bfloat16) * 1.6)(H * Dh, D) * ((H * Dh) ** -0.5)),
        }
    _A_in = _A_setup()

    def _B_setup():
        B, S, D, F = 1, 2048, 640, 1536
        return {
            "x": _w((lambda *s: torch.randn(*s, dtype=torch.bfloat16) * 0.05)(B, S, D)),
            "w1": _w((lambda *s: torch.randn(*s, dtype=torch.bfloat16) * 0.2)(D, F) * (2.0 / D) ** 0.5),
            "w3": _w((lambda *s: torch.randn(*s, dtype=torch.bfloat16) * 0.2)(D, F) * (2.0 / D) ** 0.5),
            "w2": _w((lambda *s: torch.randn(*s, dtype=torch.bfloat16) * 0.2)(F, D) * (2.0 / F) ** 0.5),
        }
    _B_in = _B_setup()

    return {
        "A_x": _A_in["x"],
        "A_k_cache": _A_in["k_cache"],
        "A_v_cache": _A_in["v_cache"],
        "A_wq": _A_in["wq"],
        "A_wo": _A_in["wo"],
        "B_x": _B_in["x"],
        "B_w1": _B_in["w1"],
        "B_w3": _B_in["w3"],
        "B_w2": _B_in["w2"],
    }

def reference(A_x, A_k_cache, A_v_cache, A_wq, A_wo, B_x, B_w1, B_w3, B_w2):
    def _A_ref(x, k_cache, v_cache, wq, wo):
        B, Sq, D = x.shape
        H, Dh = 32, 192
        q = (lambda x, *d: x.permute(*d))((x @ wq).reshape(B, Sq, H, Dh), 0, 2, 1, 3)
        scores = torch.einsum("bhqd,bhkd->bhqk", q, k_cache) * (Dh ** -0.5)
        p = _softmax(scores, axis=-1)
        o = torch.einsum("bhqk,bhkd->bhqd", p, v_cache)
        return (lambda x, *d: x.permute(*d))(o, 0, 2, 1, 3).reshape(B, Sq, H * Dh) @ wo

    def _B_ref(x, w1, w3, w2):
        gate = torch.einsum("bsd,df->bsf", x, w1)
        up = torch.einsum("bsd,df->bsf", x, w3)
        h = _silu(gate) * up
        out = torch.einsum("bsf,fd->bsd", h, w2)
        return out

    x = A_x
    xn = _layernorm(x, axis=-1)
    s = _A_ref(xn, A_k_cache, A_v_cache, A_wq, A_wo)
    g = _silu(_B_ref(xn, B_w1, B_w3, B_w2))
    return x + s * g
```

```python
import re

class I:
    __slots__ = ('t', 'kind', 'tag', 'need')
    def __init__(self, t, kind='', tag=None, need=None):
        self.t = t
        self.kind = kind
        self.tag = tag
        self.need = need
    def __repr__(self): return f"I({self.t!r})"

def ds(t, tag=None): return I(t, 'ds', tag)
def vm(t, tag=None): return I(t, 'vm', tag)
def wait(*tags, force=False, vmfix=None):
    i = I('force' if force else '', 'wait', None, list(tags)); i.tag = vmfix; return i
def op(t): return I(t)

class WaitState:
    def __init__(self):
        self.q = {'ds': [], 'vm': []}
        self.kindof = {}
    def resolve(self, seq):
        out = []
        for ins in seq:
            if ins.kind in ('ds', 'vm'):
                self.q[ins.kind].append(ins.tag)
                if ins.tag is not None: self.kindof[ins.tag] = ins.kind
                out.append(ins)
            elif ins.kind == 'wait':
                n = {}
                for tg in ins.need:
                    if tg == 'ALLDS': n['ds'] = 0; continue
                    if tg == 'ALLVM': n['vm'] = 0; continue
                    k = self.kindof.get(tg)
                    assert k is not None, f"wait on unknown tag {tg}"
                    q = self.q[k]
                    idx = [i for i, x in enumerate(q) if x == tg]
                    if not idx: continue
                    after = len(q) - 1 - idx[-1]
                    n[k] = min(n.get(k, 1 << 30), after)
                if ins.tag is not None:
                    assert n.get('vm', 1 << 30) >= ins.tag, (n, ins.need)
                    n['vm'] = ins.tag
                parts = []
                for k, nm, mx in (('vm', 'vmcnt', 63), ('ds', 'lgkmcnt', 15)):
                    if k in n:
                        v = min(n[k], mx)
                        if len(self.q[k]) > v or ins.t == 'force' or (k == 'vm' and ins.tag is not None):
                            parts.append(f"{nm}({v})")
                            self.q[k] = self.q[k][max(0, len(self.q[k]) - v):] if v else []
                if parts: out.append(I("s_waitcnt " + " ".join(parts)))
            else:
                out.append(ins)
        return out

_reg = re.compile(r'\b([vas])(\d+)\b|\b([vas])\[(\d+):(\d+)\]')
def regs(s):
    r = set()
    for m in _reg.finditer(s):
        if m.group(1): r.add((m.group(1), int(m.group(2))))
        else:
            for i in range(int(m.group(4)), int(m.group(5)) + 1): r.add((m.group(3), i))
    if re.search(r'\bvcc\b', s): r.add(('s', 'vcc'))
    if re.search(r'\bm0\b', s): r.add(('s', 'm0'))
    return r

TRANS = ('v_exp_f32', 'v_log_f32', 'v_rcp_f32', 'v_rsq_f32', 'v_sqrt_f32', 'v_sin_f32', 'v_cos_f32')
def parse(t):
    t = t.split(';')[0].strip()
    if not t or t.endswith(':') or t.startswith('.'): return None
    p = t.split(None, 1)
    mn = p[0]; ops = [x.strip() for x in p[1].split(',')] if len(p) > 1 else []
    d = dict(mn=mn, t=t, w=set(), r=set(), cls='other', srcC=set(), ab=set(), sdata=set())
    if mn.startswith('v_mfma'):
        d['cls'] = 'mfma'; d['w'] = regs(ops[0]); d['ab'] = regs(ops[1]) | regs(ops[2]); d['srcC'] = regs(ops[3])
        d['r'] = d['ab'] | d['srcC']; d['passes'] = 4 if '16x16x32' in mn else 8
    elif mn.startswith('v_cmp'):
        d['cls'] = 'valu'; d['w'] = regs(ops[0]); d['r'] = set().union(*[regs(o) for o in ops[1:]])
    elif mn.startswith('v_permlane'):
        d['cls'] = 'valu'; d['w'] = regs(ops[0]) | regs(ops[1]); d['r'] = set(d['w']); d['perm'] = True
    elif mn.startswith('v_'):
        d['cls'] = 'valu'; d['w'] = regs(ops[0]); d['r'] = set().union(*[regs(o) for o in ops[1:]]) if len(ops) > 1 else set()
        if mn.startswith(('v_fmac', 'v_dot2c', 'v_mac')): d['r'] |= d['w']
        if mn.startswith(('v_add_co', 'v_addc_co', 'v_sub_co', 'v_subb_co')): d['w'] |= regs(ops[1])
        if mn.startswith('v_cndmask') and len(ops) == 3: d['r'].add(('s', 'vcc'))
        if '_dpp' in mn or 'row_' in t or 'quad_perm' in t: d['dpp'] = True
    elif mn.startswith('ds_read'):
        d['cls'] = 'ds'; d['w'] = regs(ops[0]); d['r'] = regs(ops[1])
    elif mn.startswith('ds_write'):
        d['cls'] = 'ds'; d['r'] = set().union(*[regs(o) for o in ops])
    elif mn.startswith(('buffer_load', 'global_load')):
        d['cls'] = 'vm'
        if ' lds' in t or 'load_lds' in mn:
            d['r'] = set().union(*[regs(o) for o in ops]); d['r'].add(('s', 'm0')); d['dma'] = True
        else:
            d['w'] = regs(ops[0]); d['r'] = set().union(*[regs(o) for o in ops[1:]])
    elif mn.startswith(('buffer_store', 'global_store', 'buffer_atomic', 'global_atomic')):
        d['cls'] = 'vm'; d['r'] = set().union(*[regs(o) for o in ops])
        if mn.startswith('buffer') and ('x3' in mn or 'x4' in mn): d['sdata'] = regs(ops[0])
        if mn.startswith('global') and ('x3' in mn or 'x4' in mn): d['sdata'] = regs(ops[1])
    elif mn.startswith('s_'):
        d['cls'] = 'salu'
        if mn.startswith(('s_cmp', 's_cbranch', 's_branch', 's_waitcnt', 's_nop', 's_barrier', 's_endpgm', 's_setprio', 's_setpc', 's_sleep')):
            d['r'] = set().union(*[regs(o) for o in ops]) if ops else set()
        else:
            d['w'] = regs(ops[0]) if ops else set(); d['r'] = set().union(*[regs(o) for o in ops[1:]]) if len(ops) > 1 else set()
    d['ws'] = int(ops[0], 0) + 1 if mn == 's_nop' else 1
    return d

def check_hazards(lines, name=''):
    P = [p for p in (parse(l) for l in lines) if p]
    errs = []
    for i, c in enumerate(P):
        dist = 0
        for j in range(i - 1, max(-1, i - 24), -1):
            p = P[j]
            need = 0; why = ''
            vr = lambda s: {x for x in s if x[0] in 'va'}
            if p['cls'] == 'mfma':
                np_ = p['passes']
                n_ab = {4: 8, 8: 12}[np_]; n_ov = {4: 6, 8: 10}[np_]; n_war = {4: 3, 8: 7}[np_]
                if c['cls'] == 'mfma':
                    if p['w'] & c['ab']: need, why = n_ab, 'mfma D -> mfma A/B'
                    elif p['w'] & c['srcC'] and not (p['w'] == c['srcC'] and p['passes'] == c['passes']): need, why = n_ov, 'mfma D -> mfma C overlap'
                    elif p['w'] & c['w'] and not (p['w'] == c['srcC']): need, why = n_ov, 'mfma D -> mfma D WAW'
                elif c['cls'] in ('valu', 'ds', 'vm'):
                    if p['w'] & (vr(c['r']) | vr(c['w'])): need, why = n_ab, 'mfma D -> valu/mem'
                    elif c['cls'] == 'valu' and p['srcC'] & c['w']: need, why = n_war, 'mfma C WAR'
            elif p['cls'] == 'valu':
                wv = vr(p['w']); ws = {x for x in p['w'] if x[0] == 's'}
                if c['cls'] == 'mfma' and wv & c['r']: need, why = 2, 'valu -> mfma'
                if c['cls'] == 'valu':
                    if p['mn'].replace('_e32', '').replace('_e64', '') in TRANS and wv & c['r'] and c['mn'].replace('_e32','').replace('_e64','') not in TRANS: need, why = 1, 'trans -> valu'
                    if c.get('perm') and wv & c['r']: need, why = 2, 'valu -> permlane'
                    if c.get('dpp') and wv & c['r']: need, why = 2, 'valu -> dpp'
                    if c['mn'].startswith(('v_readfirstlane', 'v_readlane')) and wv & c['r']: need, why = max(need, 1), 'valu -> readlane'
                    if ws & c['r']: need, why = 2, 'valu sgpr -> valu'
                if c['cls'] == 'vm' and ws & c['r']: need, why = 5, 'valu sgpr -> vmem'
            elif p['cls'] == 'salu':
                if ('s', 'm0') in p['w'] and c.get('dma'): need, why = 1, 'm0 -> dma'
            elif p['cls'] == 'vm':
                if p['sdata'] & c['w']: need, why = 2, 'store data WAR'
            if need > dist:
                errs.append(f"{name}: [{why}] need {need} have {dist}: '{p['t']}' -> '{c['t']}'")
            dist += p['ws']
            if dist >= 20: break
    return errs
```

```python
import sys, math
from asmlib import *

XN_OFF = 0
XN_SIZE = 2048 * 640 * 2
A2_OFF = 0x400000
A2_BLK = 240 * 4096
WP_OFF = 0x2800000
WP_SIZE = 240 * 40 * 1024
LOG2E = 1.4426950408889634
QSCALE = LOG2E / math.sqrt(192.0)
import struct
def f2u(x): return struct.unpack('<I', struct.pack('<f', x))[0]
def hx(x): return f"0x{x:08x}"

def vr(b, n=1): return f"v{b}" if n == 1 else f"v[{b}:{b+n-1}]"
def ar(b, n=1): return f"a{b}" if n == 1 else f"a[{b}:{b+n-1}]"
def sr(b, n=1): return f"s{b}" if n == 1 else f"s[{b}:{b+n-1}]"

def kdesc(name, nvgpr, nsgpr, accoff):
    return f""".section .rodata,"a"
.p2align 6
.amdhsa_kernel {name}
  .amdhsa_next_free_vgpr {nvgpr}
  .amdhsa_next_free_sgpr {nsgpr}
  .amdhsa_accum_offset {accoff}
  .amdhsa_group_segment_fixed_size 0
  .amdhsa_kernarg_size 96
  .amdhsa_user_sgpr_count 2
  .amdhsa_user_sgpr_kernarg_segment_ptr 1
  .amdhsa_system_sgpr_workgroup_id_x 1
.end_amdhsa_kernel
"""
def khead(name):
    return f".text\n.globl {name}\n.p2align 8\n.type {name},@function\n{name}:\n"

def srd(s, lo, hi, add, nrec):
    o = []
    if add is None or add == 0:
        o += [f"s_mov_b32 s{s}, s{lo}", f"s_mov_b32 s{s+1}, s{hi}"]
    else:
        a = add if isinstance(add, str) else hx(add)
        o += [f"s_add_u32 s{s}, s{lo}, {a}", f"s_addc_u32 s{s+1}, s{hi}, 0"]
    n = nrec if isinstance(nrec, str) else hx(nrec)
    o += [f"s_mov_b32 s{s+2}, {n}", f"s_mov_b32 s{s+3}, 0x20000"]
    return o

def gen_k1():
    L = []
    A = L.append
    A("s_cmp_ge_u32 s2, 368"); A("s_cbranch_scc1 K1_done")
    A("s_load_dwordx2 s[4:5], s[0:1], 0")
    A("s_load_dwordx2 s[6:7], s[0:1], 32")
    A("s_load_dwordx2 s[8:9], s[0:1], 64")
    A("s_load_dwordx2 s[10:11], s[0:1], 88")
    A("v_lshrrev_b32 v1, 6, v0")
    A("v_and_b32 v2, 63, v0")
    A("s_cmp_ge_u32 s2, 128"); A("s_cbranch_scc1 K1_pack")
    A("v_lshrrev_b32 v3, 4, v0")
    A("v_and_b32 v4, 15, v0")
    A("s_lshl_b32 s3, s2, 4")
    A("v_add_u32 v5, s3, v3")
    A("v_mul_u32_u24 v5, 1280, v5")
    A("v_lshl_add_u32 v5, v4, 4, v5")
    A("s_waitcnt lgkmcnt(0)")
    L += srd(12, 4, 5, None, XN_SIZE)
    L += srd(16, 10, 11, XN_OFF, XN_SIZE)
    for i in range(5):
        A(f"buffer_load_dwordx4 {vr(12+4*i,4)}, v5, s[12:15], 0 offen offset:{256*i}")
    A("s_lshr_b32 s20, s2, 2"); A("s_mul_i32 s20, s20, 81920")
    A("s_and_b32 s21, s2, 3"); A("s_lshl_b32 s21, s21, 10"); A("s_add_u32 s20, s20, s21")
    A("v_lshrrev_b32 v6, 2, v4"); A("v_lshlrev_b32 v6, 12, v6")
    A("v_and_b32 v7, 3, v4"); A("v_lshl_add_u32 v6, v7, 8, v6")
    A("v_lshl_add_u32 v6, v3, 4, v6"); A("v_add_u32 v6, s20, v6")
    A("s_mov_b32 s22, 0xffff0000")
    X = 32
    for i in range(5):
        A(f"s_waitcnt vmcnt({4-i})")
        for r in range(4):
            A(f"v_lshlrev_b32 v{X+8*i+2*r}, 16, v{12+4*i+r}")
            A(f"v_and_b32 v{X+8*i+2*r+1}, s22, v{12+4*i+r}")
    def allred(v, t):
        for sh in (8, 4, 2, 1):
            A("s_nop 1")
            A(f"v_add_f32_dpp v{v}, v{v}, v{v} row_ror:{sh} row_mask:0xf bank_mask:0xf")
    for c in range(4):
        A(f"v_add_f32 v{8+c}, v{X+c}, v{X+4+c}")
    for k in range(8, 40):
        A(f"v_add_f32 v{8+k%4}, v{8+k%4}, v{X+k}")
    A("v_add_f32 v8, v8, v9"); A("v_add_f32 v10, v10, v11"); A("v_add_f32 v8, v8, v10")
    allred(8, 9)
    A(f"v_mul_f32 v8, {hx(f2u(1/640))}, v8")
    D = 72
    for k in range(40):
        A(f"v_sub_f32 v{D+k}, v{X+k}, v8")
    for c in range(2):
        A(f"v_mul_f32 v{10+c}, v{D+c}, v{D+c}")
    for k in range(2, 40):
        A(f"v_fmac_f32 v{10+k%2}, v{D+k}, v{D+k}")
    A("v_add_f32 v10, v10, v11")
    allred(10, 11)
    A(f"v_mul_f32 v10, {hx(f2u(1/640))}, v10")
    A("v_cvt_pk_bf16_f32 v9, v8, v10")
    A("v_lshlrev_b32 v8, 16, v9")
    A("v_and_b32 v10, s22, v9")
    A(f"v_add_f32 v10, {hx(f2u(1e-5))}, v10")
    A("v_cvt_pk_bf16_f32 v10, v10, v10"); A("v_and_b32 v10, s22, v10")
    A("v_sqrt_f32 v10, v10"); A("s_nop 0")
    A("v_cvt_pk_bf16_f32 v10, v10, v10"); A("v_and_b32 v10, s22, v10")
    A("v_rcp_f32 v10, v10")
    for k in range(40):
        A(f"v_sub_f32 v{D+k}, v{X+k}, v8")
    for k in range(20):
        A(f"v_cvt_pk_bf16_f32 v{X+k}, v{D+2*k}, v{D+2*k+1}")
    for k in range(20):
        A(f"v_lshlrev_b32 v{D+2*k}, 16, v{X+k}")
        A(f"v_and_b32 v{D+2*k+1}, s22, v{X+k}")
    for k in range(40):
        A(f"v_mul_f32 v{D+k}, v{D+k}, v10")
    for i in range(5):
        for r in range(4):
            k = 4*i + r
            A(f"v_cvt_pk_bf16_f32 v{12+k}, v{D+2*k}, v{D+2*k+1}")
        A(f"s_mov_b32 s23, {16384*i}")
        A(f"buffer_store_dwordx4 {vr(12+4*i,4)}, v6, s[16:19], s23 offen")
    A("s_endpgm")
    A("K1_pack:")
    A("s_sub_u32 s3, s2, 128")
    A("v_readfirstlane_b32 s24, v1")
    A("s_waitcnt lgkmcnt(0)")
    A("s_cmp_lt_u32 s3, 48")
    A("s_cselect_b32 s4, s8, s6"); A("s_cselect_b32 s5, s9, s7")
    A("s_cselect_b32 s25, 0, 48")
    A("s_sub_u32 s25, s3, s25"); A("s_mul_i32 s25, s25, 40960")
    L += srd(12, 4, 5, "s25", 40960)
    A("s_mul_i32 s26, s3, 40960"); A(f"s_add_u32 s26, s26, {hx(WP_OFF)}")
    L += srd(16, 10, 11, "s26", 40960)
    A("s_mul_i32 s27, s24, 10240")
    A("s_mul_i32 s28, s24, 320")
    for i in range(10):
        A(f"v_add_u32 v3, {64*i}, v2")
        A("v_mul_u32_u24 v4, 3277, v3"); A("v_lshrrev_b32 v4, 16, v4")
        A("v_mul_u32_u24 v5, 20, v4"); A("v_sub_u32 v5, v3, v5")
        A("v_mul_u32_u24 v4, 1280, v4"); A("v_lshl_add_u32 v4, v5, 4, v4")
        A(f"s_add_u32 m0, s27, {1024*i}")
        A("s_nop 0")
        A("buffer_load_dwordx4 v4, s[12:15], s28 offen lds")
    A("v_lshrrev_b32 v3, 2, v2")
    A("v_mul_u32_u24 v3, 320, v3")
    A("v_and_b32 v4, 3, v2"); A("v_lshl_add_u32 v3, v4, 3, v3"); A("v_add_u32 v3, s27, v3")
    A("v_lshlrev_b32 v6, 4, v2"); A("v_add_u32 v6, s27, v6")
    A("s_waitcnt vmcnt(0)")
    for t in range(10):
        A(f"ds_read_b64_tr_b16 {vr(8+4*t,2)}, v3 offset:{32*t}")
        A(f"ds_read_b64_tr_b16 {vr(10+4*t,2)}, v3 offset:{32*t+16*320}")
    for t in range(10):
        A(f"s_waitcnt lgkmcnt({min(15, 2*(9-t))})")
        A(f"s_mov_b32 s23, {1024*t}")
        A(f"buffer_store_dwordx4 {vr(8+4*t,4)}, v6, s[16:19], s23 offen")
    A("K1_done:")
    A("s_endpgm")
    errs = check_hazards(L, 'k1')
    return L, errs

class K2:
    SWQ, SGU, SXN, SK, SV, SA2 = 4, 8, 12, 16, 20, 24
    sW, sHD, sW64, sW3, sW6, sOFF, sKV, sCNT, sC, sTHR = 28, 29, 30, 31, 32, 33, 34, 35, 36, 37
    sRET = 38
    sT0 = 40
    vS = 0; vP = 32; vC = 64; vT = 80; vt = 88; vl = 92; vKF = 96; vVF = 144; vQ = 160
    vKo = 192; vVo = 195; vKa = 198; vVa = 200; vWo = 204; vGo = 207; vWa = 210; vGa = 214; vX = 216
    vTmp = 217
    vXF = 96
    vWF = 80
    KRING, VRING = 0, 49152
    THR = 65536.0

    def S(s, kt, qt): return s.vS + (qt*2 + kt)*4
    def P(s, buf, qt): return s.vP + buf*16 + qt*4
    def O(s, dt, qt): return (dt*4 + qt)*4
    def Q(s, qt, ks):
        f = qt*6 + ks
        return ar(192 + 4*f, 4) if f < 16 else vr(s.vQ + 4*(f-16), 4)
    def acc(s, nt, qt):
        if nt < 12: return ('a', (nt*4 + qt)*4)
        k = (nt - 12)*4 + qt
        if k < 16: return ('a', 192 + 4*k)
        return ('v', s.vS + 4*(k-16))
    def accs(s, nt, qt):
        f, b = s.acc(nt, qt)
        return f"{f}[{b}:{b+3}]"

    def setup(s):
        L = []; A = L.append
        A("s_cmp_ge_u32 s2, 256"); A("s_cbranch_scc1 K2_done")
        A("s_load_dwordx4 s[44:47], s[0:1], 8")
        A("s_load_dwordx2 s[48:49], s[0:1], 24")
        A("s_load_dwordx4 s[52:55], s[0:1], 48")
        A("s_load_dwordx2 s[56:57], s[0:1], 88")
        T = s.vTmp
        lane = T; A(f"v_and_b32 v{lane}, 63, v0")
        A(f"v_lshrrev_b32 v{T+1}, 6, v0")
        A(f"s_and_b32 s{s.sHD}, s2, 7"); A(f"s_lshl_b32 s{s.sHD}, s{s.sHD}, 2")
        A(f"v_readfirstlane_b32 s{s.sW}, v{T+1}")
        A(f"s_lshr_b32 s40, s2, 3"); A(f"s_and_b32 s41, s40, 3"); A(f"s_add_u32 s{s.sHD}, s{s.sHD}, s41")
        A(f"s_lshr_b32 s40, s2, 5"); A(f"s_lshl_b32 s40, s40, 2")
        A(f"s_add_u32 s{s.sW64}, s40, s{s.sW}")
        A(f"s_mul_i32 s{s.sW3}, s{s.sW}, 3072"); A(f"s_mul_i32 s{s.sW6}, s{s.sW}, 6144")
        A(f"v_lshlrev_b32 v{s.vX}, 4, v{lane}")
        A(f"s_lshl_b32 s42, s{s.sW}, 4")
        A(f"s_lshl_b32 s43, s{s.sW}, 3")
        A(f"s_mov_b32 s58, 12288")
        for i in range(3):
            p, r, c, x = T+2, T+3+2*i, T+4+2*i, T+9
            A(f"v_add_u32 v{p}, {64*i}, v{lane}")
            A(f"v_mul_u32_u24 v{r}, 2731, v{p}"); A(f"v_lshrrev_b32 v{r}, 16, v{r}")
            A(f"v_mul_u32_u24 v{c}, 24, v{r}"); A(f"v_sub_u32 v{c}, v{p}, v{c}")
            A(f"v_lshlrev_b32 v{x}, 1, v{r}"); A(f"v_and_b32 v{x}, 4, v{x}"); A(f"v_xor_b32 v{x}, v{x}, v{c}")
            A(f"v_add_u32 v{p}, s42, v{r}"); A(f"v_mul_lo_u32 v{p}, v{p}, s58")
            A(f"v_lshl_add_u32 v{s.vWo+i}, v{x}, 4, v{p}")
        A(f"s_and_b32 s59, s{s.sW}, 1"); A(f"s_mul_i32 s59, s59, 192")
        for i in range(3):
            p, r, c = T+2, T+9, T+10
            A(f"v_add_u32 v{p}, {64*i}, v{lane}"); A(f"v_add_u32 v{p}, s59, v{p}")
            A(f"v_mul_u32_u24 v{r}, 10923, v{p}"); A(f"v_lshrrev_b32 v{r}, 16, v{r}")
            A(f"v_mul_u32_u24 v{c}, 6, v{r}"); A(f"v_sub_u32 v{c}, v{p}, v{c}")
            A(f"v_mul_u32_u24 v{r}, 3072, v{r}")
            A(f"v_lshl_add_u32 v{s.vGo+i}, v{c}, 4, v{r}")
        A("s_waitcnt lgkmcnt(0)")
        A(f"s_mul_i32 s40, s{s.sHD}, 384"); A(f"s_sub_u32 s41, {640*6144*2}, s40")
        L += srd(s.SWQ, 48, 49, "s40", "s41")
        A(f"s_cmp_lt_u32 s{s.sW}, 2")
        A("s_cselect_b32 s50, s52, s54"); A("s_cselect_b32 s51, s53, s55")
        A(f"s_mul_i32 s40, s{s.sHD}, 96"); A(f"s_sub_u32 s41, {640*1536*2}, s40")
        L += srd(s.SGU, 50, 51, "s40", "s41")
        A(f"s_mul_i32 s40, s{s.sW64}, 81920")
        L += srd(s.SXN, 56, 57, "s40", 81920)
        s.rest_setup = []
        R = s.rest_setup.append
        R(f"s_mul_i32 s40, s{s.sHD}, 786432")
        s.rest_setup += srd(s.SK, 44, 45, "s40", 786432)
        s.rest_setup += srd(s.SV, 46, 47, "s40", 786432)
        R(f"s_mul_i32 s40, s{s.sW64}, {A2_BLK}"); R(f"s_add_u32 s40, s40, {hx(A2_OFF)}")
        s.rest_setup += srd(s.SA2, 56, 57, "s40", A2_BLK)
        R(f"s_mov_b32 s{s.sC}, {hx(f2u(QSCALE))}")
        R(f"s_mov_b32 s{s.sTHR}, {hx(f2u(s.THR))}")
        for i in range(3):
            r, c, row, x = T+3+2*i, T+4+2*i, T+9, T+10
            R(f"v_add_u32 v{row}, s43, v{r}")
            R(f"v_lshrrev_b32 v{x}, 1, v{row}"); R(f"v_and_b32 v{x}, 7, v{x}"); R(f"v_xor_b32 v{x}, v{x}, v{c}")
            R(f"v_mul_u32_u24 v{T+2}, 384, v{row}")
            R(f"v_lshl_add_u32 v{s.vKo+i}, v{x}, 4, v{T+2}")
            R(f"v_and_b32 v{x}, 6, v{row}"); R(f"v_xor_b32 v{x}, v{x}, v{c}")
            R(f"v_lshl_add_u32 v{s.vVo+i}, v{x}, 4, v{T+2}")
        g, i16, x, y = T+3, T+4, T+5, T+6
        R(f"v_lshrrev_b32 v{g}, 4, v{lane}"); R(f"v_and_b32 v{i16}, 15, v{lane}")
        R(f"v_lshrrev_b32 v{x}, 1, v{i16}"); R(f"v_xor_b32 v{x}, v{x}, v{g}")
        R(f"v_mul_u32_u24 v{y}, 384, v{i16}")
        R(f"v_lshl_add_u32 v{s.vKa}, v{x}, 4, v{y}")
        R(f"v_xor_b32 v{x}, 4, v{x}")
        R(f"v_lshl_add_u32 v{s.vKa+1}, v{x}, 4, v{y}")
        R(f"v_lshrrev_b32 v{x}, 2, v{lane}"); R(f"v_mul_u32_u24 v{y}, 384, v{x}")
        R(f"v_and_b32 v{T+7}, 3, v{lane}"); R(f"v_lshl_add_u32 v{y}, v{T+7}, 3, v{y}")
        R(f"v_add_u32 v{y}, {s.VRING}, v{y}")
        R(f"v_lshrrev_b32 v{x}, 1, v{x}"); R(f"v_and_b32 v{x}, 3, v{x}")
        for b in range(4):
            R(f"v_xor_b32 v{T+8}, {b}, v{x}"); R(f"v_lshl_add_u32 v{s.vVa+b}, v{T+8}, 5, v{y}")
        R(f"v_lshrrev_b32 v{x}, 2, v{i16}"); R(f"v_lshl_add_u32 v{x}, v{g}, 3, v{x}")
        R(f"v_mul_u32_u24 v{y}, 384, v{x}"); R(f"v_lshl_add_u32 v{y}, v{T+7}, 4, v{y}")
        R(f"v_lshrrev_b32 v{T+8}, 3, v{i16}")
        R(f"v_lshl_add_u32 v{s.vWa}, v{T+8}, 6, v{y}")
        R(f"v_xor_b32 v{T+8}, 1, v{T+8}")
        R(f"v_lshl_add_u32 v{s.vWa+1}, v{T+8}, 6, v{y}")
        R(f"v_add_u32 v{s.vWa+2}, 73728, v{s.vWa}"); R(f"v_add_u32 v{s.vWa+3}, 73728, v{s.vWa+1}")
        R(f"v_mul_u32_u24 v{y}, 96, v{x}"); R(f"v_lshl_add_u32 v{y}, v{T+7}, 3, v{y}")
        R(f"v_add_u32 v{s.vGa}, 24576, v{y}"); R(f"v_add_u32 v{s.vGa+1}, {24576+73728}, v{y}")
        return L

    def wslot(s, c): return ((c + 2) % 4) * 36864
    def dma_w(s, c):
        o = []
        for k in range(9):
            if k < 6:
                so = c*64*12288 + (k//3)*8*12288
                pre = [op(f"s_mov_b32 s{s.sOFF}, {so}")] if k % 3 == 0 else []
                pre.append(op(f"s_add_u32 m0, s{s.sW6}, {s.wslot(c) + 1024*k}"))
                o.append((pre, vm(f"buffer_load_dwordx4 v{s.vWo + k%3}, s[{s.SWQ}:{s.SWQ+3}], s{s.sOFF} offen lds", ('W', c))))
            else:
                pre = [op(f"s_mov_b32 s{s.sOFF}, {c*64*3072}")] if k == 6 else []
                pre.append(op(f"s_add_u32 m0, s{s.sW3}, {s.wslot(c) + 24576 + 1024*(k-6)}"))
                o.append((pre, vm(f"buffer_load_dwordx4 v{s.vGo + k-6}, s[{s.SGU}:{s.SGU+3}], s{s.sOFF} offen lds", ('W', c))))
        return o
    def dma_kv(s, which, u, soff):
        o = []
        ring, srd_, vo = (s.KRING, s.SK, s.vKo) if which == 'K' else (s.VRING, s.SV, s.vVo)
        for k in range(3):
            pre = []
            if soff is None and k == 0: pre.append(op(f"s_mov_b32 s{s.sOFF}, {u*12288}"))
            pre.append(op(f"s_add_u32 m0, s{s.sW3}, {ring + (u%4)*12288 + 1024*k}"))
            so = soff or f"s{s.sOFF}"
            o.append((pre, vm(f"buffer_load_dwordx4 v{vo+k}, s[{srd_}:{srd_+3}], {so} offen lds", (which, u))))
        return o
    def xload(s, j, qt):
        return vm(f"buffer_load_dwordx4 {vr(s.vXF + 16*(j%4) + 4*qt, 4)}, v{s.vX}, s[{s.SXN}:{s.SXN+3}], s{s.sKV} offen offset:{1024*qt}", ('X', j))
    def wread(s, j, nt):
        c, kst = j // 2, j % 2
        so = s.wslot(c); hi = 0
        if so >= 73728: so -= 73728; hi = 1
        b = s.vWF + 4*((j*18 + nt) % 4)
        o = []
        for sec in range(2):
            if nt < 12:
                sp = nt >> 1; a_, e = sp >> 1, sp & 1
                off = so + kst*12288 + sec*1536 + 128*a_ + 8*(nt & 1)
                o.append(ds(f"ds_read_b64_tr_b16 {vr(b+2*sec,2)}, v{s.vWa + 2*hi + e} offset:{off}", ('WF', j, nt)))
            else:
                t = (nt - 12) % 3; up = (nt - 12) // 3
                off = so + kst*3072 + sec*384 + 32*t + up*6144
                o.append(ds(f"ds_read_b64_tr_b16 {vr(b+2*sec,2)}, v{s.vGa + hi} offset:{off}", ('WF', j, nt)))
        return o
    def kread(s, u, kt):
        o = []
        for ks in range(6):
            off = s.KRING + (u % 4)*12288 + kt*6144 + 128*(ks >> 1)
            o.append(ds(f"ds_read_b128 {vr(s.vKF + 24*kt + 4*ks, 4)}, v{s.vKa + (ks & 1)} offset:{off}", ('KF', u, kt)))
        return o
    def vread(s, u, dt):
        o = []
        b = s.vVF + 4*(dt % 4)
        for sec in range(2):
            off = (u % 4)*12288 + 128*(dt >> 2) + 6144*sec
            o.append(ds(f"ds_read_b64_tr_b16 {vr(b+2*sec,2)}, v{s.vVa + (dt & 3)} offset:{off}", ('VF', u, dt)))
        return o

    def proj(s):
        seq = []
        def setx(j): return op(f"s_mov_b32 s{s.sKV}, {j*4096}")
        seq.append(setx(0))
        d0 = s.dma_w(0)
        for pre, d in d0[:3]: seq += pre + [op("s_nop 0"), d]
        for qt in range(4): seq.append(s.xload(0, qt))
        for pre, d in d0[3:]: seq += pre + [op("s_nop 0"), d]
        seq.append(setx(1))
        for qt in range(4): seq.append(s.xload(1, qt))
        for c in (1, 2):
            for pre, d in s.dma_w(c): seq += pre + [op("s_nop 0"), d]
        seq.append(setx(2))
        for qt in range(4): seq.append(s.xload(2, qt))
        seq += [op(t) for t in s.rest_setup]
        for r in range(256): seq.append(op(f"v_accvgpr_write_b32 a{r}, 0"))
        for r in range(32): seq.append(op(f"v_mov_b32 v{s.vS + r}, 0"))
        seq += [wait(('W', 0), ('X', 0)), op("s_barrier")]
        for nt in range(3): seq += s.wread(0, nt)
        seq.append(wait(('WF', 0, 0)))
        NG = 20*72
        pre = [[] for _ in range(NG + 8)]
        for j in range(20):
            for nt in range(18):
                G = j*72 + nt*4
                if G >= 12:
                    r = s.wread(j, nt)
                    pre[G-12].append(r[0]); pre[G-11].append(r[1])
                if G > 0:
                    need = [('WF', j, nt)]
                    if nt == 0: need.append(('X', j))
                    pre[G-1].append(wait(*need))
            if j + 3 < 20:
                pre[j*72 + 1].append(setx(j+3))
                for qt in range(4): pre[j*72 + 2 + 4*qt].append(s.xload(j+3, qt))
        for c in range(10):
            Gb = (c+1)*144 - 14
            if c < 9: pre[Gb] += [wait(('W', c+1)), op("s_barrier")]
            if c + 3 < 10: dl = s.dma_w(c+3)
            elif c == 7: dl = s.dma_kv('K', 0, None) + s.dma_kv('K', 1, None) + s.dma_kv('K', 2, None)
            elif c == 8: dl = s.dma_kv('K', 3, None) + s.dma_kv('V', 0, None) + s.dma_kv('V', 1, None)
            else: dl = []
            g = (c+1)*144 + 18
            for p_, d in dl:
                pre[g-1] += p_; pre[g].append(d); g += 4
        for G in range(NG):
            j, nt, qt = G // 72, (G % 72) // 4, G % 4
            b = s.vWF + 4*((j*18 + nt) % 4)
            a = s.accs(nt, qt)
            seq.append(op(f"v_mfma_f32_16x16x32_bf16 {a}, {vr(b,4)}, {vr(s.vXF + 16*(j%4) + 4*qt, 4)}, {a}"))
            seq += pre[G]
        return seq

    def conv(s):
        seq = []
        A = lambda t: seq.append(op(t))
        seq += [wait(('K', 0), ('K', 1)), op("s_barrier")]
        seq += s.kread(0, 0) + s.kread(0, 1)
        A("s_nop 4")
        A(f"s_mov_b32 s40, {hx(f2u(-LOG2E))}")
        T = s.vP
        for t in range(3):
            A(f"s_mul_i32 s41, s{s.sHD}, 3"); A(f"s_add_u32 s41, s41, {t}")
            A(f"s_and_b32 s42, s41, 1"); A(f"s_lshl_b32 s42, s42, 3")
            A(f"s_lshr_b32 s41, s41, 1"); A(f"s_lshl_b32 s41, s41, 12"); A(f"s_add_u32 s41, s41, s42")
            for qt in range(4):
                B = T + 16*(qt & 1)
                fg, bg = s.acc(12 + t, qt); fu, bu = s.acc(15 + t, qt)
                g_ = []; u_ = []
                for r in range(4):
                    A(f"v_accvgpr_read_b32 v{B+r}, a{bg+r}"); g_.append(B+r)
                for r in range(4):
                    if fu == 'a':
                        A(f"v_accvgpr_read_b32 v{B+4+r}, a{bu+r}"); u_.append(B+4+r)
                    else: u_.append(bu+r)
                for r in range(4): A(f"v_mul_f32 v{B+8+r}, s40, v{g_[r]}")
                for r in range(4): A(f"v_exp_f32 v{B+8+r}, v{B+8+r}")
                for r in range(4): A(f"v_mul_f32 v{B+r}, v{g_[r]}, v{u_[r]}")
                for r in range(4): A(f"v_add_f32 v{B+8+r}, 1.0, v{B+8+r}")
                for r in range(4): A(f"v_rcp_f32 v{B+8+r}, v{B+8+r}")
                A("s_nop 0")
                for r in range(4): A(f"v_mul_f32 v{B+r}, v{B+r}, v{B+8+r}")
                A(f"v_cvt_pk_bf16_f32 v{B+12}, v{B}, v{B+1}"); A(f"v_cvt_pk_bf16_f32 v{B+13}, v{B+2}, v{B+3}")
                seq.append(vm(f"buffer_store_dwordx2 {vr(B+12,2)}, v{s.vX}, s[{s.SA2}:{s.SA2+3}], s41 offen offset:{1024*qt}", ('HST',)))
        A(f"s_mov_b32 s42, s{s.sC}"); A(f"s_mov_b32 s43, s{s.sC}")
        n = 0
        for qt in range(4):
            for ks in range(6):
                B = T + 8*(n % 4); n += 1
                for h in range(2):
                    _, b = s.acc(2*ks + h, qt)
                    for r in range(4): A(f"v_accvgpr_read_b32 v{B+4*h+r}, a{b+r}")
                for r in range(4): A(f"v_pk_mul_f32 {vr(B+2*r,2)}, {vr(B+2*r,2)}, s[42:43]")
                f = qt*6 + ks
                for r in range(4):
                    if f < 16:
                        A(f"v_cvt_pk_bf16_f32 v{B+r}, v{B+2*r}, v{B+2*r+1}")
                    else:
                        A(f"v_cvt_pk_bf16_f32 v{s.vQ + 4*(f-16) + r}, v{B+2*r}, v{B+2*r+1}")
                if f < 16:
                    for r in range(4): A(f"v_accvgpr_write_b32 a{192+4*f+r}, v{B+r}")
        return seq

    def fix_body(s, buf, init):
        L = []; A = L.append
        T = s.vT
        if not init: A("s_nop 7")
        for qt in range(4):
            b = s.S(0, qt); m = s.vTmp + qt; x = s.vTmp + 4
            A(f"v_max3_f32 v{m}, v{b}, v{b+1}, v{b+2}")
            A(f"v_max3_f32 v{m}, v{m}, v{b+3}, v{b+4}")
            A(f"v_max3_f32 v{m}, v{m}, v{b+5}, v{b+6}")
            A(f"v_max_f32 v{m}, v{m}, v{b+7}")
            for sw in ('32', '16'):
                A(f"v_mov_b32 v{x}, v{m}"); A("s_nop 1")
                A(f"v_permlane{sw}_swap_b32 v{x}, v{m}")
                A(f"v_max_f32 v{m}, v{m}, v{x}")
            if not init: A(f"v_max_f32 v{m}, 0, v{m}")
            for r in range(4):
                if init: A(f"v_sub_f32 v{s.vC + 4*qt + r}, 0, v{m}")
                else: A(f"v_sub_f32 v{s.vC + 4*qt + r}, v{s.vC + 4*qt + r}, v{m}")
            for r in range(8): A(f"v_sub_f32 v{T+r}, v{b+r}, v{m}")
            for r in range(8): A(f"v_exp_f32 v{T+r}, v{T+r}")
            A(f"v_add_f32 v{s.vt+qt}, v{T}, v{T+1}")
            for r in range(2, 8): A(f"v_add_f32 v{s.vt+qt}, v{s.vt+qt}, v{T+r}")
            for r in range(4): A(f"v_cvt_pk_bf16_f32 v{s.P(buf,qt)+r}, v{T+2*r}, v{T+2*r+1}")
            if init:
                A(f"v_mov_b32 v{s.vl+qt}, 0")
            else:
                A(f"v_sub_f32 v{m}, 0, v{m}"); A(f"v_exp_f32 v{m}, v{m}"); A("s_nop 0")
                A(f"v_mul_f32 v{s.vl+qt}, v{s.vl+qt}, v{m}")
                for dt in range(12):
                    o = s.O(dt, qt)
                    for r in range(4): A(f"v_accvgpr_read_b32 v{T+r}, a{o+r}")
                    for r in range(4): A(f"v_mul_f32 v{T+r}, v{T+r}, v{m}")
                    for r in range(4): A(f"v_accvgpr_write_b32 a{o+r}, v{T+r}")
        A("s_nop 1")
        return L

    def mfA(s, u, g, zeroC=False):
        kt, qt, ks = g // 24, (g % 24) // 6, g % 6
        d = vr(s.S(kt, qt), 4)
        c = d if ks else ('0' if zeroC else vr(s.vC + 4*qt, 4))
        return op(f"v_mfma_f32_16x16x32_bf16 {d}, {vr(s.vKF + 24*kt + 4*ks, 4)}, {s.Q(qt, ks)}, {c}")
    def mfC(s, u, g, zeroC=False):
        dt, qt = g // 4, g % 4
        d = ar(s.O(dt, qt), 4)
        return op(f"v_mfma_f32_16x16x32_bf16 {d}, {vr(s.vVF + 4*(dt%4), 4)}, {vr(s.P(u%2, qt), 4)}, {'0' if zeroC else d}")

    def first(s):
        seq = []
        seq.append(wait(('KF', 0, 0), ('KF', 0, 1)))
        seq.append(op("s_barrier"))
        non = [[] for _ in range(48)]
        g = 1
        for p_, d in s.dma_kv('K', 4, None) + s.dma_kv('V', 2, None):
            non[g] += p_; non[g+1].append(d); g += 3
        for i, r in enumerate(s.kread(1, 0)): non[26 + 2*i].append(r)
        non[40].append(op(f"s_mov_b32 s{s.sKV}, {5*12288}"))
        non[41].append(op(f"s_mov_b32 s{s.sOFF}, {3*12288}"))
        for g in range(48):
            seq.append(s.mfA(0, g, zeroC=True)); seq += non[g]
        seq.append(op("s_nop 7"))
        seq += [op(t) for t in s.fix_body(0, True)]
        return seq

    def step(s, u, last=False, site=None):
        non = [[] for _ in range(96)]; val = [[] for _ in range(96)]
        novalu = set()
        if not last:
            for i, r in enumerate(s.kread(u+1, 1)): non[1 + 2*i].append(r)
            non[22].append(wait(('KF', u+1, 1), ('K', u+2), ('V', u), vmfix=12))
            non[23].append(op("s_barrier"))
            dl = s.dma_kv('K', u+5, f"s{s.sKV}") + s.dma_kv('V', u+3, f"s{s.sOFF}")
            for (p_, d), g in zip(dl, (25, 27, 29, 31, 33, 38)):
                non[g] += p_; non[g+1].append(d); novalu.add(g+1)
            non[42].append(op(f"s_add_u32 s{s.sKV}, s{s.sKV}, 12288"))
            non[43].append(op(f"s_add_u32 s{s.sOFF}, s{s.sOFF}, 12288"))
            if u + 2 < 64:
                for i, r in enumerate(s.kread(u+2, 0)): non[50 + 4*i].append(r)
        for dt in range(12):
            r = s.vread(u, dt)
            non[36 + 4*dt].append(r[0]); non[37 + 4*dt].append(r[1])
            non[47 + 4*dt].append(wait(('VF', u, dt)))
        ops = []
        def add(t, cost, early, deps=()):
            ops.append([t, cost, early, list(deps), None]); return len(ops) - 1
        g0 = 48 if last else 0
        for qt in range(4):
            add(f"v_add_f32 v{s.vl+qt}, v{s.vl+qt}, v{s.vt+qt}", 1, g0)
        if not last:
            nb = (u + 1) % 2
            lastadd = {}
            prevT = {}
            n = 0
            for kt in range(2):
                for qt in range(4):
                    ready = kt*24 + qt*6 + 5 + 5
                    T = s.vT + 4*(n % 2); n += 1
                    b = s.S(kt, qt)
                    e = [add(f"v_exp_f32 v{T+r}, v{b+r}", 2, ready, prevT.get(T+r, [])) for r in range(4)]
                    t = s.vt + qt
                    if kt == 0:
                        a0 = add(f"v_add_f32 v{t}, v{T}, v{T+1}", 1, ready, [e[0], e[1], qt]); al = [a0, a0]
                    else:
                        a0 = add(f"v_add_f32 v{t}, v{t}, v{T}", 1, ready, [e[0], lastadd[qt]])
                        a1 = add(f"v_add_f32 v{t}, v{t}, v{T+1}", 1, ready, [e[1], a0]); al = [a0, a1]
                    c0 = add(f"v_cvt_pk_bf16_f32 v{s.P(nb,qt)+2*kt}, v{T}, v{T+1}", 1, ready, [e[0], e[1]])
                    a2 = add(f"v_add_f32 v{t}, v{t}, v{T+2}", 1, ready, [e[2], al[1]])
                    a3 = add(f"v_add_f32 v{t}, v{t}, v{T+3}", 1, ready, [e[3], a2])
                    c1 = add(f"v_cvt_pk_bf16_f32 v{s.P(nb,qt)+2*kt+1}, v{T+2}, v{T+3}", 1, ready, [e[2], e[3]])
                    lastadd[qt] = a3
                    prevT[T] = [al[0], c0]; prevT[T+1] = [al[1], c0]; prevT[T+2] = [a2, c1]; prevT[T+3] = [a3, c1]
            x = s.vTmp
            m0 = add(f"v_max3_f32 v{x}, v{s.vt}, v{s.vt+1}, v{s.vt+2}", 1, 0, [lastadd[0], lastadd[1], lastadd[2]])
            m1 = add(f"v_max_f32 v{x}, v{x}, v{s.vt+3}", 1, 0, [m0, lastadd[3]])
            add(f"v_cmp_nge_f32 vcc, s{s.sTHR}, v{x}", 1, 0, [m1])
        done = 0
        for g in range(g0, 96):
            cap = 0 if g in novalu else 2 - max(0, len(non[g]) - 1)
            for i, o in enumerate(ops):
                if o[4] is not None or o[1] > cap or o[2] > g: continue
                ok = True
                for d in o[3]:
                    dg = ops[d][4]
                    if dg is None or (ops[d][1] == 2 and dg >= g): ok = False; break
                if not ok: continue
                o[4] = g; val[g].append(op(o[0])); cap -= o[1]; done += 1
                if cap == 0: break
        assert done == len(ops), (done, len(ops))
        s.lastvalu = max(o[4] for o in ops)
        seq = []
        if last:
            seq += [wait(('V', u)), op("s_barrier")]
            for g in range(36, 48): seq += non[g]
        for g in range(g0, 96):
            seq.append(s.mfA(u+1, g) if g < 48 else s.mfC(u, g - 48, zeroC=(u == 0)))
            seq += non[g] + val[g]
        if not last:
            seq.append(I(f"s_cbranch_vccnz K2_rare_{site}", 'br'))
            seq.append(I(f"K2_ret_{site}:", 'label'))
        return seq

    def epilogue(s):
        seq = []; A = lambda t: seq.append(op(t))
        x = s.vTmp
        for qt in range(4):
            l = s.vl + qt
            for sw in ('32', '16'):
                A(f"v_mov_b32 v{x}, v{l}"); A("s_nop 1")
                A(f"v_permlane{sw}_swap_b32 v{x}, v{l}")
                A(f"v_add_f32 v{l}, v{l}, v{x}")
            A(f"v_rcp_f32 v{s.vC + 2*qt}, v{l}")
            A("s_nop 0")
            A(f"v_mov_b32 v{s.vC + 2*qt + 1}, v{s.vC + 2*qt}")
        A(f"s_mul_i32 s40, s{s.sHD}, {6*4096}"); A(f"s_add_u32 s40, s40, {48*4096}")
        n = 0
        for sp in range(6):
            for qt in range(4):
                B = s.vS + 8*(n % 4); D = s.vP + 4*(n % 8); n += 1
                for h in range(2):
                    o = s.O(2*sp + h, qt)
                    for r in range(4): A(f"v_accvgpr_read_b32 v{B+4*h+r}, a{o+r}")
                for r in range(4): A(f"v_pk_mul_f32 {vr(B+2*r,2)}, {vr(B+2*r,2)}, {vr(s.vC+2*qt,2)}")
                for r in range(4): A(f"v_cvt_pk_bf16_f32 v{D+r}, v{B+2*r}, v{B+2*r+1}")
                seq.append(vm(f"buffer_store_dwordx4 {vr(D,4)}, v{s.vX}, s[{s.SA2}:{s.SA2+3}], s40 offen offset:{1024*qt}", ('OST',)))
            A("s_add_u32 s40, s40, 4096")
        return seq

    def gen(s):
        L = s.setup()
        W = WaitState()
        txt = lambda seq: [i.t for i in W.resolve(seq)]
        dyn = list(L)
        pre = txt(s.proj()) + txt(s.conv()) + txt(s.first())
        steps = {}
        LOOP0, NIT = 1, 15
        def site(u):
            if LOOP0 <= u < LOOP0 + 4*NIT: return f"L{(u-LOOP0)%4}"
            return f"P{u}"
        for u in range(64):
            steps[u] = txt(s.step(u, last=(u == 63), site=site(u)))
        for u in range(LOOP0 + 4, LOOP0 + 4*NIT):
            assert steps[u] == steps[u-4], f"step {u} differs"
        epi = txt(s.epilogue())
        out = L + pre + steps[0]
        out += [f"s_mov_b32 s{s.sCNT}, {NIT}", ".p2align 6", "K2_loop:"]
        for u in range(LOOP0, LOOP0 + 4): out += steps[u]
        out += [f"s_sub_u32 s{s.sCNT}, s{s.sCNT}, 1", f"s_cmp_lg_u32 s{s.sCNT}, 0", "s_cbranch_scc1 K2_loop"]
        for u in range(LOOP0 + 4*NIT, 64): out += steps[u]
        out += ["s_nop 7"] + epi + ["K2_done:", "s_endpgm"]
        sites = [(site(u), (u+1) % 2) for u in [0] + list(range(LOOP0, LOOP0+4)) + list(range(LOOP0+4*NIT, 63))]
        for st, par in sites:
            out += [f"K2_rare_{st}:", f"s_call_b64 s[{s.sRET}:{s.sRET+1}], K2_fix{par}", f"s_branch K2_ret_{st}"]
        errs = []
        for par in range(2):
            body = s.fix_body(par, False)
            out += [f"K2_fix{par}:"] + body + [f"s_setpc_b64 s[{s.sRET}:{s.sRET+1}]"]
            errs += check_hazards(steps[1+par][-40:] + body + steps[2+par][:40], f'fix{par}')
        dyn = L + pre
        for u in range(64): dyn += steps[u]
        dyn += ["s_nop 7"] + epi
        errs += check_hazards(dyn, 'k2')
        return out, errs

def gen_k3(NST=6):
    L = []; A = L.append
    A("s_cmp_ge_u32 s2, 256"); A("s_cbranch_scc1 K3_done")
    A("s_load_dwordx2 s[4:5], s[0:1], 0")
    A("s_load_dwordx2 s[6:7], s[0:1], 72")
    A("s_load_dwordx2 s[8:9], s[0:1], 88")
    A("v_lshrrev_b32 v1, 6, v0"); A("v_and_b32 v2, 63, v0")
    A("s_and_b32 s28, s2, 7"); A("s_lshl_b32 s28, s28, 2")
    A("v_readfirstlane_b32 s30, v1")
    A("s_lshr_b32 s29, s2, 3"); A("s_and_b32 s31, s29, 3"); A("s_add_u32 s28, s28, s31")
    A("s_lshr_b32 s29, s29, 2")
    A("v_lshlrev_b32 v3, 4, v2"); A("v_add_u32 v4, 4096, v3")
    A("s_waitcnt lgkmcnt(0)")
    A(f"s_mul_i32 s31, s28, {A2_BLK}"); A(f"s_add_u32 s31, s31, {hx(A2_OFF)}")
    L += srd(12, 8, 9, "s31", A2_BLK)
    A("s_mul_i32 s31, s29, 5120"); A(f"s_sub_u32 s32, {WP_SIZE}, s31"); A(f"s_add_u32 s31, s31, {hx(WP_OFF)}")
    L += srd(16, 8, 9, "s31", "s32")
    A("s_lshl_b32 s33, s30, 12")
    A("s_mul_i32 s34, s30, 40960")
    F0 = 16
    def fr(st, i): return F0 + 36*st + 4*i
    def loads(st, tag):
        o = []
        for t in range(5):
            vo, off = ("v3", 1024*t) if t < 4 else ("v4", 0)
            o.append(vm(f"buffer_load_dwordx4 {vr(fr(st,4+t),4)}, {vo}, s[16:19], s34 offen offset:{off}", tag))
        for qt in range(4):
            o.insert(2*qt, vm(f"buffer_load_dwordx4 {vr(fr(st,qt),4)}, v3, s[12:15], s33 offen offset:{1024*qt}", tag))
        return o
    adv = [op("s_add_u32 s33, s33, 16384"), op("s_add_u32 s34, s34, 163840")]
    seq = []
    for st in range(NST - 1):
        seq += loads(st, ('F', st)) + adv
    L2 = []
    B = L2.append
    L2 += srd(20, 4, 5, None, XN_SIZE)
    L2 += srd(24, 6, 7, None, XN_SIZE)
    B("s_lshl_b32 s35, s28, 6"); B("s_lshl_b32 s36, s30, 4"); B("s_add_u32 s35, s35, s36")
    B("v_and_b32 v5, 15, v2"); B("v_add_u32 v5, s35, v5"); B("v_mul_u32_u24 v5, 1280, v5")
    B("v_lshrrev_b32 v6, 4, v2"); B("v_lshl_add_u32 v5, v6, 3, v5")
    B("s_mul_i32 s35, s29, 160"); B("v_add_u32 v5, s35, v5")
    for r in range(160): B(f"v_accvgpr_write_b32 a{r}, 0")
    seq += [op(t) for t in L2]
    W = WaitState()
    pre = [i.t for i in W.resolve(seq)]
    its = []
    for k in range(60):
        st = k % NST
        accb = 80 if k < 12 else 0
        q = [wait(('F', k))]
        ld = loads((k + NST - 1) % NST, ('F', k + NST - 1)) + adv
        for g in range(20):
            t, qt = g // 4, g % 4
            a = ar(accb + (t*4 + qt)*4, 4)
            q.append(op(f"v_mfma_f32_16x16x32_bf16 {a}, {vr(fr(st,4+t),4)}, {vr(fr(st,qt),4)}, {a}"))
            if g >= 1 and g % 2 == 1 and ld: q.append(ld.pop(0))
            if g == 18: q += ld[-2:]; ld = ld[:-2]
        assert not ld
        its.append([i.t for i in W.resolve(q)])
    for k in range(60):
        ref = k % NST + (0 if k < 12 else 12)
        assert its[k] == its[ref], k
    out = L + pre
    out += [f"s_mov_b32 s37, {12//NST}", "K3_loopf:"]
    for k in range(NST): out += its[k]
    out += ["s_sub_u32 s37, s37, 1", "s_cmp_lg_u32 s37, 0", "s_cbranch_scc1 K3_loopf"]
    out += [f"s_mov_b32 s37, {48//NST}", "K3_loops:"]
    for k in range(12, 12 + NST): out += its[k]
    out += ["s_sub_u32 s37, s37, 1", "s_cmp_lg_u32 s37, 0", "s_cbranch_scc1 K3_loops"]
    E = []; A = E.append
    A("s_waitcnt vmcnt(0)")
    for t in range(5):
        A(f"buffer_load_dwordx2 {vr(6+2*t,2)}, v5, s[20:23], 0 offen offset:{32*t}")
    A("s_mul_i32 s35, s30, 10240")
    A("v_add_u32 v16, s35, v3"); A("v_add_u32 v17, 81920, v16")
    A("s_mul_i32 s35, s30, 40960"); A("v_add_u32 v18, s35, v3")
    for qt in range(4):
        for p in range(2):
            for t in range(5):
                a = (80 if p else 0) + (t*4 + qt)*4
                A(f"ds_write_b128 v{16 + qt//2}, {ar(a,4)} offset:{(qt%2)*40960 + (p*5+t)*1024}")
    A("s_waitcnt lgkmcnt(0)"); A("s_barrier")
    R = 20
    for src in range(4):
        for i in range(10):
            A(f"ds_read_b128 {vr(R + 40*src + 4*i, 4)}, v18 offset:{src*10240 + i*1024}")
    A("s_waitcnt lgkmcnt(0)")
    for i in range(40):
        A(f"v_add_f32 v{R+i}, v{R+i}, v{R+40+i}"); A(f"v_add_f32 v{R+80+i}, v{R+80+i}, v{R+120+i}")
    for i in range(40):
        A(f"v_add_f32 v{R+i}, v{R+i}, v{R+80+i}")
    A(f"s_mov_b32 s35, {hx(f2u(-LOG2E))}"); A("s_mov_b32 s36, 0xffff0000")
    for i in range(20): A(f"v_mul_f32 v{R+40+i}, s35, v{R+20+i}")
    for i in range(20): A(f"v_exp_f32 v{R+40+i}, v{R+40+i}")
    for i in range(20): A(f"v_mul_f32 v{R+i}, v{R+i}, v{R+20+i}")
    for i in range(20): A(f"v_add_f32 v{R+40+i}, 1.0, v{R+40+i}")
    for i in range(20): A(f"v_rcp_f32 v{R+40+i}, v{R+40+i}")
    A("s_waitcnt vmcnt(0)")
    for t in range(5):
        for h in range(2):
            A(f"v_lshlrev_b32 v{R+60+4*t+2*h}, 16, v{6+2*t+h}")
            A(f"v_and_b32 v{R+60+4*t+2*h+1}, s36, v{6+2*t+h}")
    for i in range(20): A(f"v_fmac_f32 v{R+60+i}, v{R+i}, v{R+40+i}")
    for t in range(5):
        for h in range(2):
            A(f"v_cvt_pk_bf16_f32 v{6+2*t+h}, v{R+60+4*t+2*h}, v{R+60+4*t+2*h+1}")
        A(f"buffer_store_dwordx2 {vr(6+2*t,2)}, v5, s[24:27], 0 offen offset:{32*t}")
    out += E + ["K3_done:", "s_endpgm"]
    dyn = L + pre
    for k in range(60): dyn += its[k]
    dyn += E
    return out, check_hazards(dyn, 'k3')

HEADER = """; recurrent_scan__mha_block_cached__glu_gated_swiglu__prompt : LN + (QKV-cached attention, SwiGLU) + gated residual
; @launch kernel=prep_kernel grid=(368,1,1) block=(256,1,1) lds=40960
; @launch kernel=attn_kernel grid=(256,1,1) block=(256,1,1) lds=147456
; @launch kernel=outp_kernel grid=(256,1,1) block=(256,1,1) lds=163840
.amdgcn_target "amdgcn-amd-amdhsa--gfx950"
"""
def fmt(L):
    return "".join((l if l.endswith(':') else "    " + l) + "\n" for l in L)

def main(path):
    k1, e1 = gen_k1()
    k2o = K2(); k2, e2 = k2o.gen()
    k3, e3 = gen_k3()
    errs = e1 + e2 + e3
    for e in sorted(set(errs))[:40]: print("HAZARD", e)
    s = HEADER
    s += khead("prep_kernel") + fmt(k1)
    s += khead("attn_kernel") + fmt(k2)
    s += khead("outp_kernel") + fmt(k3)
    s += kdesc("prep_kernel", 112, 40, 112) + kdesc("attn_kernel", 512, 64, 256) + kdesc("outp_kernel", 416, 48, 256)
    open(path, 'w').write(s)
    print("written", path, len(s), "bytes; lastvalu gap", k2o.lastvalu, "; hazards", len(errs))

if __name__ == '__main__':
    main(sys.argv[1] if len(sys.argv) > 1 else 'recurrent_scan__mha_block_cached__glu_gated_swiglu__prompt.s')
```

```python
import sys, math
from asmlib import *

XN_OFF = 0
XN_SIZE = 2048 * 640 * 2
A2_OFF = 0x400000
A2_BLK = 240 * 4096
WP_OFF = 0x2800000
WP_SIZE = 240 * 40 * 1024
FL_OFF = 0x4400000
LOG2E = 1.4426950408889634
QSCALE = LOG2E / math.sqrt(192.0)
import struct
def f2u(x): return struct.unpack('<I', struct.pack('<f', x))[0]
def hx(x): return f"0x{x:08x}"

def vr(b, n=1): return f"v{b}" if n == 1 else f"v[{b}:{b+n-1}]"
def ar(b, n=1): return f"a{b}" if n == 1 else f"a[{b}:{b+n-1}]"
def sr(b, n=1): return f"s{b}" if n == 1 else f"s[{b}:{b+n-1}]"

def kdesc(name, nvgpr, nsgpr, accoff):
    return f""".section .rodata,"a"
.p2align 6
.amdhsa_kernel {name}
  .amdhsa_next_free_vgpr {nvgpr}
  .amdhsa_next_free_sgpr {nsgpr}
  .amdhsa_accum_offset {accoff}
  .amdhsa_group_segment_fixed_size 0
  .amdhsa_kernarg_size 96
  .amdhsa_user_sgpr_count 2
  .amdhsa_user_sgpr_kernarg_segment_ptr 1
  .amdhsa_system_sgpr_workgroup_id_x 1
.end_amdhsa_kernel
"""
STAMP = False
EXP = set()
STAMP_OFF = 0x8000000
def stamp(i):
    if not STAMP: return []
    return ["s_memtime s[86:87]", "s_memrealtime s[88:89]", "s_waitcnt lgkmcnt(0)", f"v_writelane_b32 v230, s86, {i}", f"v_writelane_b32 v231, s88, {i}"]
def stamp_out(n, wslo, wave):
    if not STAMP: return []
    o = ["s_waitcnt vmcnt(0)"] + stamp(n-1)
    o += ["s_lshl_b32 s86, s2, 2", f"s_add_u32 s86, s86, s{wave}", "s_lshl_b32 s86, s86, 7", f"s_add_u32 s86, s86, {hx(STAMP_OFF)}"]
    o += [f"s_add_u32 s92, s{wslo}, s86", f"s_addc_u32 s93, s{wslo+1}, 0", "s_mov_b32 s94, 128", "s_mov_b32 s95, 0x20000"]
    o += ["v_mbcnt_lo_u32_b32 v1, -1, 0", "v_mbcnt_hi_u32_b32 v1, -1, v1", "v_lshlrev_b32 v1, 3, v1"]
    o += ["buffer_store_dwordx2 v[230:231], v1, s[92:95], 0 offen"]
    return o
def khead(name):
    return f".text\n.globl {name}\n.p2align 8\n.type {name},@function\n{name}:\n"

def srd(s, lo, hi, add, nrec):
    o = []
    if add is None or add == 0:
        o += [f"s_mov_b32 s{s}, s{lo}", f"s_mov_b32 s{s+1}, s{hi}"]
    else:
        a = add if isinstance(add, str) else hx(add)
        o += [f"s_add_u32 s{s}, s{lo}, {a}", f"s_addc_u32 s{s+1}, s{hi}, 0"]
    n = nrec if isinstance(nrec, str) else hx(nrec)
    o += [f"s_mov_b32 s{s+2}, {n}", f"s_mov_b32 s{s+3}, 0x20000"]
    return o

def gen_k1():
    L = []
    A = L.append
    A("s_cmp_ge_u32 s2, 128"); A("s_cbranch_scc1 K1_done")
    A("s_load_dwordx2 s[4:5], s[0:1], 0")
    A("s_load_dwordx2 s[10:11], s[0:1], 88")
    A("v_lshrrev_b32 v3, 4, v0")
    A("v_and_b32 v4, 15, v0")
    A("s_lshl_b32 s3, s2, 4")
    A("v_add_u32 v5, s3, v3")
    A("v_mul_u32_u24 v5, 1280, v5")
    A("v_lshl_add_u32 v5, v4, 4, v5")
    A("s_waitcnt lgkmcnt(0)")
    L += srd(12, 4, 5, None, XN_SIZE)
    L += srd(16, 10, 11, XN_OFF, XN_SIZE)
    for i in range(5):
        A(f"buffer_load_dwordx4 {vr(12+4*i,4)}, v5, s[12:15], 0 offen offset:{256*i}")
    A("s_lshr_b32 s20, s2, 2"); A("s_mul_i32 s20, s20, 81920")
    A("s_and_b32 s21, s2, 3"); A("s_lshl_b32 s21, s21, 10"); A("s_add_u32 s20, s20, s21")
    A("v_lshrrev_b32 v6, 2, v4"); A("v_lshlrev_b32 v6, 12, v6")
    A("v_and_b32 v7, 3, v4"); A("v_lshl_add_u32 v6, v7, 8, v6")
    A("v_lshl_add_u32 v6, v3, 4, v6"); A("v_add_u32 v6, s20, v6")
    A("s_mov_b32 s22, 0xffff0000")
    X = 32
    for i in range(5):
        A(f"s_waitcnt vmcnt({4-i})")
        for r in range(4):
            A(f"v_lshlrev_b32 v{X+8*i+2*r}, 16, v{12+4*i+r}")
            A(f"v_and_b32 v{X+8*i+2*r+1}, s22, v{12+4*i+r}")
    def allred(v, t):
        for sh in (8, 4, 2, 1):
            A("s_nop 1")
            A(f"v_add_f32_dpp v{v}, v{v}, v{v} row_ror:{sh} row_mask:0xf bank_mask:0xf")
    for c in range(4):
        A(f"v_add_f32 v{8+c}, v{X+c}, v{X+4+c}")
    for k in range(8, 40):
        A(f"v_add_f32 v{8+k%4}, v{8+k%4}, v{X+k}")
    A("v_add_f32 v8, v8, v9"); A("v_add_f32 v10, v10, v11"); A("v_add_f32 v8, v8, v10")
    allred(8, 9)
    A(f"v_mul_f32 v8, {hx(f2u(1/640))}, v8")
    D = 72
    for k in range(40):
        A(f"v_sub_f32 v{D+k}, v{X+k}, v8")
    for c in range(2):
        A(f"v_mul_f32 v{10+c}, v{D+c}, v{D+c}")
    for k in range(2, 40):
        A(f"v_fmac_f32 v{10+k%2}, v{D+k}, v{D+k}")
    A("v_add_f32 v10, v10, v11")
    allred(10, 11)
    A(f"v_mul_f32 v10, {hx(f2u(1/640))}, v10")
    A("v_cvt_pk_bf16_f32 v9, v8, v10")
    A("v_lshlrev_b32 v8, 16, v9")
    A("v_and_b32 v10, s22, v9")
    A(f"v_add_f32 v10, {hx(f2u(1e-5))}, v10")
    A("v_cvt_pk_bf16_f32 v10, v10, v10"); A("v_and_b32 v10, s22, v10")
    A("v_sqrt_f32 v10, v10"); A("s_nop 0")
    A("v_cvt_pk_bf16_f32 v10, v10, v10"); A("v_and_b32 v10, s22, v10")
    A("v_rcp_f32 v10, v10")
    for k in range(40):
        A(f"v_sub_f32 v{D+k}, v{X+k}, v8")
    for k in range(20):
        A(f"v_cvt_pk_bf16_f32 v{X+k}, v{D+2*k}, v{D+2*k+1}")
    for k in range(20):
        A(f"v_lshlrev_b32 v{D+2*k}, 16, v{X+k}")
        A(f"v_and_b32 v{D+2*k+1}, s22, v{X+k}")
    for k in range(40):
        A(f"v_mul_f32 v{D+k}, v{D+k}, v10")
    for i in range(5):
        for r in range(4):
            k = 4*i + r
            A(f"v_cvt_pk_bf16_f32 v{12+k}, v{D+2*k}, v{D+2*k+1}")
        A(f"s_mov_b32 s23, {16384*i}")
        A(f"buffer_store_dwordx4 {vr(12+4*i,4)}, v6, s[16:19], s23 offen")
    A("K1_done:")
    A("s_endpgm")
    errs = check_hazards(L, 'k1')
    return L, errs

XB_OFF = 0x3400000
POLLMAX = 0x40000
F2_OFF = 0x5000000

def place(non, items, gaps):
    assert len(gaps) >= len(items), (len(gaps), len(items))
    for (p_, d), g in zip(items, gaps):
        non[g-1] += p_; non[g].append(d)

class K2:
    SWQ, SGU, SXN, SK, SV, SA2 = 4, 8, 12, 16, 20, 24
    SA2I, SWP = 4, 8
    sW, sHD, sW64, sW3, sW6, sOFF, sKV, sCNT, sC, sTHR = 28, 29, 30, 31, 32, 33, 34, 35, 36, 37
    sRET = 38
    SXB, SPS, SPD, SFL = 60, 64, 68, 72
    SX, SOUT = 64, 68
    SCL, SF2 = 44, 52
    sCL, sF2W = 48, 49
    sPK, sPD = 90, 91
    sKQ, sMT, sNG, sPO, sA, sB, sM, sFI = 86 - 86 + 12, 13, 14, 15, 33, 34, 31, 58
    vS = 0; vP = 32; vC = 64; vT = 232; vt = 88; vl = 92; vKF = 96; vVF = 144; vQ = 160
    vKo = 192; vVo = 195; vKa = 198; vVa = 200; vWo = 204; vGo = 207; vWa = 210; vGa = 214; vX = 216
    vTmp = 217
    XFB = (96, 128, 32)
    vWF = 232
    vPK = 226; vPs = 80; vPa = 81; vPo = 83; vNEG = 84; vF0 = 82
    vX4, vX8, vLa, vZ, vFl = 248, 249, 250, 251, 252
    BSL = (96, 112, 128, 160, 176, 232)
    vA = 0
    KRING, VRING = 0, 49152
    PKL = 159744
    THR = 65536.0
    R3 = 6

    def S(s, kt, qt): return s.vS + (qt*2 + kt)*4
    def P(s, buf, qt): return s.vP + buf*16 + qt*4
    def O(s, dt, qt): return (dt*4 + qt)*4
    def Q(s, qt, ks):
        f = qt*6 + ks
        return ar(192 + 4*f, 4) if f < 16 else vr(s.vQ + 4*(f-16), 4)
    def acc(s, nt, qt):
        if nt < 12: return ('a', (nt*4 + qt)*4)
        k = (nt - 12)*4 + qt
        if k < 16: return ('a', 192 + 4*k)
        return ('v', s.vS + 4*(k-16))
    def accs(s, nt, qt):
        f, b = s.acc(nt, qt)
        return f"{f}[{b}:{b+3}]"

    def setup(s):
        L = []; A = L.append
        A("s_cmp_ge_u32 s2, 256"); A("s_cbranch_scc1 K2_done")
        A("s_load_dwordx2 s[48:49], s[0:1], 24")
        A("s_load_dwordx4 s[52:55], s[0:1], 48")
        A("s_load_dwordx2 s[56:57], s[0:1], 88")
        A("s_load_dwordx4 s[44:47], s[0:1], 8")
        A("s_load_dwordx2 s[76:77], s[0:1], 0")
        A("s_load_dwordx2 s[78:79], s[0:1], 32")
        A("s_load_dwordx2 s[80:81], s[0:1], 64")
        A("s_load_dwordx2 s[82:83], s[0:1], 72")
        A("s_load_dwordx2 s[84:85], s[0:1], 80")
        T = s.vTmp
        lane = T; A(f"v_and_b32 v{lane}, 63, v0")
        A(f"v_lshrrev_b32 v{T+1}, 6, v0")
        A(f"s_and_b32 s{s.sHD}, s2, 7"); A(f"s_lshl_b32 s{s.sHD}, s{s.sHD}, 2")
        A(f"v_readfirstlane_b32 s{s.sW}, v{T+1}")
        A(f"s_lshr_b32 s40, s2, 3"); A(f"s_and_b32 s41, s40, 3"); A(f"s_add_u32 s{s.sHD}, s{s.sHD}, s41")
        A(f"s_lshr_b32 s40, s2, 5"); A(f"s_lshl_b32 s{s.sFI}, s40, 5"); A(f"s_lshl_b32 s40, s40, 2")
        A(f"s_add_u32 s{s.sFI}, s{s.sFI}, s{s.sHD}")
        A(f"s_add_u32 s{s.sW64}, s40, s{s.sW}")
        A(f"s_mul_i32 s{s.sW3}, s{s.sW}, 3072"); A(f"s_mul_i32 s{s.sW6}, s{s.sW}, 6144")
        A(f"v_lshlrev_b32 v{s.vX}, 4, v{lane}")
        A(f"s_lshl_b32 s42, s{s.sW}, 4")
        A(f"s_lshl_b32 s43, s{s.sW}, 3")
        A(f"s_mov_b32 s59, 12288")
        for i in range(3):
            p, r, c, x = T+2, T+3+2*i, T+4+2*i, T+9
            A(f"v_add_u32 v{p}, {64*i}, v{lane}")
            A(f"v_mul_u32_u24 v{r}, 2731, v{p}"); A(f"v_lshrrev_b32 v{r}, 16, v{r}")
            A(f"v_mul_u32_u24 v{c}, 24, v{r}"); A(f"v_sub_u32 v{c}, v{p}, v{c}")
            A(f"v_lshlrev_b32 v{x}, 1, v{r}"); A(f"v_and_b32 v{x}, 4, v{x}"); A(f"v_xor_b32 v{x}, v{x}, v{c}")
            A(f"v_add_u32 v{p}, s42, v{r}"); A(f"v_mul_lo_u32 v{p}, v{p}, s59")
            A(f"v_lshl_add_u32 v{s.vWo+i}, v{x}, 4, v{p}")
        A(f"s_and_b32 s59, s{s.sW}, 1"); A(f"s_mul_i32 s59, s59, 192")
        for i in range(3):
            p, r, c = T+2, T+9, T+10
            A(f"v_add_u32 v{p}, {64*i}, v{lane}"); A(f"v_add_u32 v{p}, s59, v{p}")
            A(f"v_mul_u32_u24 v{r}, 10923, v{p}"); A(f"v_lshrrev_b32 v{r}, 16, v{r}")
            A(f"v_mul_u32_u24 v{c}, 6, v{r}"); A(f"v_sub_u32 v{c}, v{p}, v{c}")
            A(f"v_mul_u32_u24 v{r}, 3072, v{r}")
            A(f"v_lshl_add_u32 v{s.vGo+i}, v{c}, 4, v{r}")
        A("s_waitcnt lgkmcnt(0)")
        A(f"s_mul_i32 s40, s{s.sW64}, 81920")
        L += srd(s.SXN, 56, 57, "s40", 81920)
        A(f"s_mul_i32 s40, s{s.sHD}, 384"); A(f"s_sub_u32 s41, {640*6144*2}, s40")
        L += srd(s.SWQ, 48, 49, "s40", "s41")
        A(f"s_cmp_lt_u32 s{s.sW}, 2")
        A("s_cselect_b32 s50, s52, s54"); A("s_cselect_b32 s51, s53, s55")
        A(f"s_mul_i32 s40, s{s.sHD}, 96"); A(f"s_sub_u32 s41, {640*1536*2}, s40")
        L += srd(s.SGU, 50, 51, "s40", "s41")
        s.rest1 = []; R = s.rest1.append
        g, i16, x, y = T+11, T+12, T+2, T+9
        R(f"v_lshrrev_b32 v{g}, 4, v{lane}"); R(f"v_and_b32 v{i16}, 15, v{lane}"); R(f"v_and_b32 v{T+1}, 3, v{lane}")
        R(f"v_lshrrev_b32 v{x}, 2, v{i16}"); R(f"v_lshl_add_u32 v{x}, v{g}, 3, v{x}")
        R(f"v_mul_u32_u24 v{y}, 384, v{x}"); R(f"v_lshl_add_u32 v{y}, v{T+1}, 4, v{y}")
        R(f"v_lshrrev_b32 v{T+10}, 3, v{i16}")
        R(f"v_lshl_add_u32 v{s.vWa}, v{T+10}, 6, v{y}")
        R(f"v_xor_b32 v{T+10}, 1, v{T+10}")
        R(f"v_lshl_add_u32 v{s.vWa+1}, v{T+10}, 6, v{y}")
        R(f"v_add_u32 v{s.vWa+2}, 73728, v{s.vWa}"); R(f"v_add_u32 v{s.vWa+3}, 73728, v{s.vWa+1}")
        R(f"v_mul_u32_u24 v{y}, 96, v{x}"); R(f"v_lshl_add_u32 v{y}, v{T+1}, 3, v{y}")
        R(f"v_add_u32 v{s.vGa}, 24576, v{y}"); R(f"v_add_u32 v{s.vGa+1}, {24576+73728}, v{y}")
        R(f"s_mul_i32 s40, s{s.sHD}, 786432")
        s.rest1 += srd(s.SK, 44, 45, "s40", 786432)
        s.rest1 += srd(s.SV, 46, 47, "s40", 786432)
        R(f"s_mul_i32 s40, s{s.sW64}, {A2_BLK}"); R(f"s_add_u32 s40, s40, {hx(A2_OFF)}")
        s.rest1 += srd(s.SA2, 56, 57, "s40", A2_BLK)
        R(f"s_mov_b32 s{s.sC}, {hx(f2u(QSCALE))}")
        R(f"s_mov_b32 s{s.sTHR}, {hx(f2u(s.THR))}")
        s.rest1 += srd(s.SFL, 84, 85, None, 256)
        R("s_cmp_lt_u32 s2, 48")
        R("s_cselect_b32 s50, s80, s78"); R("s_cselect_b32 s51, s81, s79"); R("s_cselect_b32 s40, 0, 48")
        R("s_sub_u32 s40, s2, s40"); R("s_mul_i32 s40, s40, 40960")
        R("s_cmp_lt_u32 s2, 240"); R("s_cselect_b32 s41, 40960, 0"); R("s_cselect_b32 s40, s40, 0")
        s.rest1 += srd(s.SPS, 50, 51, "s40", "s41")
        R("s_cmp_lt_u32 s2, 240"); R("s_cselect_b32 s41, 10240, 0")
        R("s_mul_i32 s40, s2, 40960"); R(f"s_add_u32 s40, s40, {hx(WP_OFF)}"); R(f"s_mul_i32 s42, s{s.sW}, 10240"); R("s_add_u32 s40, s40, s42")
        s.rest1 += srd(s.SPD, 56, 57, "s40", "s41")
        R("s_and_b32 s40, s2, 1"); R("s_lshl_b32 s40, s40, 3"); R("s_lshr_b32 s41, s2, 3"); R("s_and_b32 s42, s41, 7")
        R("s_add_u32 s40, s40, s42"); R("s_lshr_b32 s41, s41, 3"); R("s_lshl_b32 s40, s40, 2"); R("s_add_u32 s40, s40, s41")
        R("s_mul_i32 s40, s40, 327680"); R(f"s_add_u32 s40, s40, {hx(XB_OFF)}")
        s.rest1 += srd(s.SXB, 56, 57, "s40", 327680)
        for i in range(3):
            r, c, row, x2 = T+3+2*i, T+4+2*i, T+9, T+10
            R(f"v_add_u32 v{row}, s43, v{r}")
            R(f"v_lshrrev_b32 v{x2}, 1, v{row}"); R(f"v_and_b32 v{x2}, 7, v{x2}"); R(f"v_xor_b32 v{x2}, v{x2}, v{c}")
            R(f"v_mul_u32_u24 v{T+2}, 384, v{row}")
            R(f"v_lshl_add_u32 v{s.vKo+i}, v{x2}, 4, v{T+2}")
            R(f"v_and_b32 v{x2}, 6, v{row}"); R(f"v_xor_b32 v{x2}, v{x2}, v{c}")
            R(f"v_lshl_add_u32 v{s.vVo+i}, v{x2}, 4, v{T+2}")
        x, y = T+5, T+6
        R(f"v_lshrrev_b32 v{x}, 1, v{i16}"); R(f"v_xor_b32 v{x}, v{x}, v{g}")
        R(f"v_mul_u32_u24 v{y}, 384, v{i16}")
        R(f"v_lshl_add_u32 v{s.vKa}, v{x}, 4, v{y}")
        R(f"v_xor_b32 v{x}, 4, v{x}")
        R(f"v_lshl_add_u32 v{s.vKa+1}, v{x}, 4, v{y}")
        R(f"v_lshrrev_b32 v{x}, 2, v{lane}"); R(f"v_mul_u32_u24 v{y}, 384, v{x}")
        R(f"v_lshl_add_u32 v{y}, v{T+1}, 3, v{y}")
        R(f"v_add_u32 v{y}, {s.VRING}, v{y}")
        R(f"s_lshl_b32 s40, s{s.sW}, 10"); R(f"s_add_u32 s59, s40, {s.PKL}")
        R(f"v_lshlrev_b32 v{s.vPa}, 3, v{lane}"); R(f"v_add_u32 v{s.vPa}, s59, v{s.vPa}")
        R(f"v_lshrrev_b32 v{x}, 1, v{x}"); R(f"v_and_b32 v{x}, 3, v{x}")
        for b in range(4):
            R(f"v_xor_b32 v{T+8}, {b}, v{x}"); R(f"v_lshl_add_u32 v{s.vVa+b}, v{T+8}, 5, v{y}")
        R(f"v_lshrrev_b32 v{x}, 1, v{lane}"); R(f"v_mul_u32_u24 v{x}, 1280, v{x}"); R(f"v_and_b32 v{y}, 1, v{lane}")
        R(f"v_lshl_add_u32 v{s.vPs}, v{y}, 4, v{x}"); R(f"s_mul_i32 s40, s{s.sW}, 320"); R(f"v_add_u32 v{s.vPs}, s40, v{s.vPs}")
        R("s_and_b32 s40, s2, 7"); R("s_lshr_b32 s40, s40, 1"); R("s_mul_i32 s42, s40, 81920")
        R(f"s_mul_i32 s40, s{s.sW}, 20480"); R("s_add_u32 s42, s42, s40")
        s.rest1 += srd(s.SCL, s.SXB, s.SXB+1, "s42", 20480)
        R(f"s_mov_b32 s{s.sCL}, 0"); R(f"s_mov_b32 s{s.sPK}, 0"); R(f"s_mov_b32 s{s.sPD}, 0")
        s.rest1 += srd(s.SF2, 56, 57, F2_OFF, 4096)
        R(f"s_lshr_b32 s40, s{s.sFI}, 3"); R("s_lshl_b32 s40, s40, 7"); R(f"s_and_b32 s41, s{s.sFI}, 7"); R("s_lshl_b32 s41, s41, 2")
        R(f"s_add_u32 s{s.sF2W}, s40, s41")
        R(f"v_mov_b32 v{s.vF0}, 0x40000000"); R("v_cmp_eq_u32 vcc, 0, v0"); R("s_nop 1"); R(f"v_cndmask_b32_e64 v{s.vF0}, v{s.vF0}, 0, vcc")
        return L

    def wslot(s, c): return ((c + 2) % 4) * 36864
    def dma_w(s, c):
        o = []
        for k in range(9):
            if k < 6:
                so = c*64*12288 + (k//3)*8*12288
                pre = [op(f"s_mov_b32 s{s.sOFF}, {so}")] if k % 3 == 0 else []
                pre.append(op(f"s_add_u32 m0, s{s.sW6}, {s.wslot(c) + 1024*k}"))
                o.append((pre, vm(f"buffer_load_dwordx4 v{s.vWo + k%3}, s[{s.SWQ}:{s.SWQ+3}], s{s.sOFF} offen lds", ('W', c))))
            else:
                pre = [op(f"s_mov_b32 s{s.sOFF}, {c*64*3072}")] if k == 6 else []
                pre.append(op(f"s_add_u32 m0, s{s.sW3}, {s.wslot(c) + 24576 + 1024*(k-6)}"))
                o.append((pre, vm(f"buffer_load_dwordx4 v{s.vGo + k-6}, s[{s.SGU}:{s.SGU+3}], s{s.sOFF} offen lds", ('W', c))))
        return o
    def dma_kv(s, which, u, soff):
        o = []
        ring, srd_, vo = (s.KRING, s.SK, s.vKo) if which == 'K' else (s.VRING, s.SV, s.vVo)
        for k in range(3):
            pre = []
            if soff is None and k == 0: pre.append(op(f"s_mov_b32 s{s.sOFF}, {u*12288}"))
            pre.append(op(f"s_add_u32 m0, s{s.sW3}, {ring + (u%4)*12288 + 1024*k}"))
            so = soff or f"s{s.sOFF}"
            o.append((pre, vm(f"buffer_load_dwordx4 v{vo+k}, s[{srd_}:{srd_+3}], {so} offen lds", (which, u))))
        return o
    def XF(s, c, kst, qt): return s.XFB[c % 3] + 16*kst + 4*qt
    def xloads(s, c):
        o = []
        for kst in range(2):
            for qt in range(4):
                pre = [op(f"s_mov_b32 s{s.sKV}, {(2*c+kst)*4096}")] if qt == 0 else []
                o.append((pre, vm(f"buffer_load_dwordx4 {vr(s.XF(c,kst,qt), 4)}, v{s.vX}, s[{s.SXN}:{s.SXN+3}], s{s.sKV} offen offset:{1024*qt}", ('X', c))))
        return o
    def WF(s, n, kst): return s.vWF + 8*(n % 3) + 4*kst
    def wread(s, n):
        c, nt = n // 18, n % 18
        so = s.wslot(c); hi = 0
        if so >= 73728: so -= 73728; hi = 1
        o = []
        for kst in range(2):
            b = s.WF(n, kst)
            for sec in range(2):
                if nt < 12:
                    sp = nt >> 1; a_, e = sp >> 1, sp & 1
                    off = so + kst*12288 + sec*1536 + 128*a_ + 8*(nt & 1)
                    o.append(ds(f"ds_read_b64_tr_b16 {vr(b+2*sec,2)}, v{s.vWa + 2*hi + e} offset:{off}", ('WF', n)))
                else:
                    t = (nt - 12) % 3; up = (nt - 12) // 3
                    off = so + kst*3072 + sec*384 + 32*t + up*6144
                    o.append(ds(f"ds_read_b64_tr_b16 {vr(b+2*sec,2)}, v{s.vGa + hi} offset:{off}", ('WF', n)))
        return o
    def kread(s, u, kt):
        o = []
        for ks in range(6):
            off = s.KRING + (u % 4)*12288 + kt*6144 + 128*(ks >> 1)
            o.append(ds(f"ds_read_b128 {vr(s.vKF + 24*kt + 4*ks, 4)}, v{s.vKa + (ks & 1)} offset:{off}", ('KF', u, kt)))
        return o
    def vread(s, u, dt):
        o = []
        b = s.vVF + 4*(dt % 4)
        for sec in range(2):
            off = (u % 4)*12288 + 128*(dt >> 2) + 6144*sec
            o.append(ds(f"ds_read_b64_tr_b16 {vr(b+2*sec,2)}, v{s.vVa + (dt & 3)} offset:{off}", ('VF', u, dt)))
        return o

    def proj(s):
        seq = []
        def flat(items, nop=True):
            o = []
            for p_, d in items: o += p_ + ([op("s_nop 0")] if nop and d.t.endswith('lds') else []) + [d]
            return o
        d0, x0 = s.dma_w(0), s.xloads(0)
        seq += flat(d0[:3]) + flat(x0[:4]) + flat(d0[3:]) + flat(x0[4:])
        if 'nopf' not in EXP:
            seq += [op("s_getpc_b64 s[86:87]"), op("K2_pc:"), op("s_sub_u32 s86, s86, K2_pc-attn_kernel"), op("s_subb_u32 s87, s87, 0"),
                    op(f"v_lshlrev_b32 v{s.vNEG}, 3, v{s.vX}"), op(f"s_lshl_b32 s40, s{s.sW}, 13"), op(f"v_add_u32 v{s.vNEG}, s40, v{s.vNEG}"),
                    op(f"v_add_u32 v{s.vNEG+1}, 32768, v{s.vNEG}"),
                    op(f"v_min_u32 v{s.vNEG}, K2_end-attn_kernel-4, v{s.vNEG}"), op(f"v_min_u32 v{s.vNEG+1}, K2_end-attn_kernel-4, v{s.vNEG+1}"),
                    vm(f"global_load_dword v{s.vNEG+2}, v{s.vNEG}, s[86:87]", ('PF',)), vm(f"global_load_dword v{s.vNEG+3}, v{s.vNEG+1}, s[86:87]", ('PF',))]
        seq += flat(s.dma_w(1)) + flat(s.xloads(1))
        seq += [op(t) for t in s.rest1]
        seq += [wait(('W', 0), ('X', 0)), op("s_barrier")]
        seq += s.wread(0) + s.wread(1)
        seq.append(wait(('WF', 0)))
        NG = 1440
        non = [[] for _ in range(NG + 32)]
        for n in range(180):
            G = 8*n
            if n >= 2:
                for i, r in enumerate(s.wread(n)): non[G - 16 + i].append(r)
            if n > 0:
                non[G-1].append(wait(('WF', n), *([('X', n//18)] if n % 18 == 0 else [])))
        for c in range(10):
            base = 144*c
            g5 = [base + 8*k + 5 for k in range(18)]
            g6 = [base + 8*k + 6 for k in range(18)]
            if c < 9:
                Gb = base + 144 - 18
                non[Gb - 1].append(wait(('W', c+1))); non[Gb].append(op("s_barrier"))
            if c == 0: dl = s.dma_w(2)
            elif c + 2 < 10: dl = s.dma_w(c+2)
            elif c == 8: dl = s.dma_kv('K', 0, None) + s.dma_kv('K', 1, None) + s.dma_kv('K', 2, None)
            else: dl = s.dma_kv('K', 3, None) + s.dma_kv('V', 0, None) + s.dma_kv('V', 1, None)
            place(non, dl, g5[:9])
            if c + 2 < 10:
                for (p_, d), g in zip(s.xloads(c+2), g6[:8]):
                    non[g-2] += p_; non[g].append(d)
        for G in range(NG):
            n, qt, kst = G // 8, (G % 8) // 2, G % 2
            c, nt = n // 18, n % 18
            a = s.accs(nt, qt)
            seq.append(op(f"v_mfma_f32_16x16x32_bf16 {a}, {vr(s.WF(n,kst),4)}, {vr(s.XF(c,kst,qt), 4)}, {'0' if c == 0 and kst == 0 else a}"))
            seq += non[G]
        return seq

    def conv(s):
        seq = []
        A = lambda t: seq.append(op(t))
        seq += [wait(('K', 0), ('K', 1)), op("s_barrier")]
        seq += s.kread(0, 0) + s.kread(0, 1)
        A("s_nop 4")
        A(f"s_mov_b32 s40, {hx(f2u(-LOG2E))}")
        T = s.vP
        for t in range(3):
            A(f"s_mul_i32 s41, s{s.sHD}, 3"); A(f"s_add_u32 s41, s41, {t}")
            A(f"s_and_b32 s42, s41, 1"); A(f"s_lshl_b32 s42, s42, 3")
            A(f"s_lshr_b32 s41, s41, 1"); A(f"s_lshl_b32 s41, s41, 12"); A(f"s_add_u32 s41, s41, s42")
            for qt in range(4):
                B = T + 16*(qt & 1)
                fg, bg = s.acc(12 + t, qt); fu, bu = s.acc(15 + t, qt)
                g_ = []; u_ = []
                for r in range(4):
                    A(f"v_accvgpr_read_b32 v{B+r}, a{bg+r}"); g_.append(B+r)
                for r in range(4):
                    if fu == 'a':
                        A(f"v_accvgpr_read_b32 v{B+4+r}, a{bu+r}"); u_.append(B+4+r)
                    else: u_.append(bu+r)
                for r in range(4): A(f"v_mul_f32 v{B+8+r}, s40, v{g_[r]}")
                for r in range(4): A(f"v_exp_f32 v{B+8+r}, v{B+8+r}")
                for r in range(2): A(f"v_pk_mul_f32 {vr(B+2*r,2)}, {vr(g_[2*r],2)}, {vr(u_[2*r],2)}")
                for r in range(4): A(f"v_add_f32 v{B+8+r}, 1.0, v{B+8+r}")
                for r in range(4): A(f"v_rcp_f32 v{B+8+r}, v{B+8+r}")
                A("s_nop 0")
                for r in range(2): A(f"v_pk_mul_f32 {vr(B+2*r,2)}, {vr(B+2*r,2)}, {vr(B+8+2*r,2)}")
                A(f"v_cvt_pk_bf16_f32 v{B+12}, v{B}, v{B+1}"); A(f"v_cvt_pk_bf16_f32 v{B+13}, v{B+2}, v{B+3}")
                seq.append(vm(f"buffer_store_dwordx2 {vr(B+12,2)}, v{s.vX}, s[{s.SA2}:{s.SA2+3}], s41 offen offset:{1024*qt} sc1", ('ST1',)))
        A(f"s_mov_b32 s42, s{s.sC}"); A(f"s_mov_b32 s43, s{s.sC}")
        n = 0
        for qt in range(4):
            for ks in range(6):
                B = T + 8*(n % 4); n += 1
                for h in range(2):
                    _, b = s.acc(2*ks + h, qt)
                    for r in range(4): A(f"v_accvgpr_read_b32 v{B+4*h+r}, a{b+r}")
                for r in range(4): A(f"v_pk_mul_f32 {vr(B+2*r,2)}, {vr(B+2*r,2)}, s[42:43]")
                f = qt*6 + ks
                for r in range(4):
                    if f < 16:
                        A(f"v_cvt_pk_bf16_f32 v{B+r}, v{B+2*r}, v{B+2*r+1}")
                    else:
                        A(f"v_cvt_pk_bf16_f32 v{s.vQ + 4*(f-16) + r}, v{B+2*r}, v{B+2*r+1}")
                if f < 16:
                    for r in range(4): A(f"v_accvgpr_write_b32 a{192+4*f+r}, v{B+r}")
        seq += [op(t) for t in s.p3_setup()]
        seq.append(vm(f"buffer_store_dword v{s.vZ}, v{s.vF0}, s[{s.SF2}:{s.SF2+3}], s{s.sF2W} offen sc1", ('ST1',)))
        return seq

    def p3_setup(s):
        L = []; A = L.append
        A(f"s_and_b32 s40, s2, 7"); A(f"s_lshr_b32 s{s.sKQ}, s40, 1")
        A(f"s_and_b32 s40, s40, 1"); A(f"s_lshl_b32 s40, s40, 3"); A("s_lshr_b32 s41, s2, 3")
        A(f"s_and_b32 s42, s41, 7"); A(f"s_add_u32 s{s.sMT}, s40, s42"); A(f"s_lshr_b32 s{s.sNG}, s41, 3")
        A(f"s_lshr_b32 s40, s{s.sW}, 1"); A(f"s_lshl_b32 s41, s{s.sMT}, 1"); A("s_add_u32 s41, s41, s40")
        A(f"s_mul_i32 s41, s41, {A2_BLK}"); A(f"s_and_b32 s42, s{s.sW}, 1"); A("s_lshl_b32 s43, s42, 11")
        A("s_add_u32 s41, s41, s43"); A(f"s_add_u32 s41, s41, {hx(A2_OFF)}")
        A(f"s_mul_i32 s50, s{s.sKQ}, 48"); A("s_add_u32 s50, s50, 96")
        A("s_lshl_b32 s51, s50, 12"); A("s_sub_u32 s51, s51, s43")
        L += srd(s.SA2I, 56, 57, "s41", "s51")
        A(f"s_mul_i32 s41, s{s.sNG}, 10240"); A("s_mul_i32 s43, s42, 5120"); A("s_add_u32 s41, s41, s43")
        A("s_mul_i32 s43, s40, 40960"); A("s_add_u32 s41, s41, s43")
        A("s_mul_i32 s51, s50, 40960"); A("s_sub_u32 s51, s51, s41"); A(f"s_add_u32 s41, s41, {hx(WP_OFF)}")
        L += srd(s.SWP, 56, 57, "s41", "s51")
        A(f"s_lshr_b32 s40, s{s.sMT}, 1"); A("s_lshl_b32 s40, s40, 2"); A(f"s_add_u32 s40, s40, s{s.sKQ}")
        A(f"s_lshl_b32 s{s.sPO}, s40, 7")
        A(f"v_lshrrev_b32 v{s.vPo}, 2, v{s.vX}"); A(f"v_and_b32 v{s.vPo}, 28, v{s.vPo}")
        A(f"v_add_u32 v{s.vX4}, 4096, v{s.vX}"); A(f"v_add_u32 v{s.vX8}, 8192, v{s.vX}"); A(f"v_add_u32 v{s.vLa}, 98304, v{s.vX}")
        A(f"v_mov_b32 v{s.vZ}, 0"); A(f"v_mov_b32 v{s.vFl}, 1")
        for r in range(4): A(f"v_mov_b32 v{s.vNEG+r}, -1")
        return L

    def fix_body(s, buf, init):
        L = []; A = L.append
        T = s.vT
        if not init: A("s_nop 7")
        for qt in range(4):
            b = s.S(0, qt); m = s.vTmp + qt; x = s.vTmp + 4
            A(f"v_max3_f32 v{m}, v{b}, v{b+1}, v{b+2}")
            A(f"v_max3_f32 v{m}, v{m}, v{b+3}, v{b+4}")
            A(f"v_max3_f32 v{m}, v{m}, v{b+5}, v{b+6}")
            A(f"v_max_f32 v{m}, v{m}, v{b+7}")
            for sw in ('32', '16'):
                A(f"v_mov_b32 v{x}, v{m}"); A("s_nop 1")
                A(f"v_permlane{sw}_swap_b32 v{x}, v{m}")
                A(f"v_max_f32 v{m}, v{m}, v{x}")
            if not init: A(f"v_max_f32 v{m}, 0, v{m}")
            for r in range(4):
                if init: A(f"v_sub_f32 v{s.vC + 4*qt + r}, 0, v{m}")
                else: A(f"v_sub_f32 v{s.vC + 4*qt + r}, v{s.vC + 4*qt + r}, v{m}")
            for r in range(8): A(f"v_sub_f32 v{T+r}, v{b+r}, v{m}")
            for r in range(8): A(f"v_exp_f32 v{T+r}, v{T+r}")
            A(f"v_add_f32 v{s.vt+qt}, v{T}, v{T+1}")
            for r in range(2, 8): A(f"v_add_f32 v{s.vt+qt}, v{s.vt+qt}, v{T+r}")
            for r in range(4): A(f"v_cvt_pk_bf16_f32 v{s.P(buf,qt)+r}, v{T+2*r}, v{T+2*r+1}")
            if init:
                A(f"v_mov_b32 v{s.vl+qt}, 0")
            else:
                A(f"v_sub_f32 v{m}, 0, v{m}"); A(f"v_exp_f32 v{m}, v{m}"); A("s_nop 0")
                A(f"v_mul_f32 v{s.vl+qt}, v{s.vl+qt}, v{m}")
                for dt in range(12):
                    o = s.O(dt, qt)
                    for r in range(4): A(f"v_accvgpr_read_b32 v{T+r}, a{o+r}")
                    for r in range(4): A(f"v_mul_f32 v{T+r}, v{T+r}, v{m}")
                    for r in range(4): A(f"v_accvgpr_write_b32 a{o+r}, v{T+r}")
        A("s_nop 1")
        return L

    def mfA(s, u, g, zeroC=False):
        kt, qt, ks = g // 24, (g % 24) // 6, g % 6
        d = vr(s.S(kt, qt), 4)
        c = d if ks else ('0' if zeroC else vr(s.vC + 4*qt, 4))
        return op(f"v_mfma_f32_16x16x32_bf16 {d}, {vr(s.vKF + 24*kt + 4*ks, 4)}, {s.Q(qt, ks)}, {c}")
    def mfC(s, u, g, zeroC=False):
        dt, qt = g // 4, g % 4
        d = ar(s.O(dt, qt), 4)
        return op(f"v_mfma_f32_16x16x32_bf16 {d}, {vr(s.vVF + 4*(dt%4), 4)}, {vr(s.P(u%2, qt), 4)}, {'0' if zeroC else d}")

    def first(s):
        seq = []
        seq.append(wait(('KF', 0, 0), ('KF', 0, 1)))
        non = [[] for _ in range(48)]
        place(non, s.dma_kv('V', 2, None), (2, 5, 8))
        for i, r in enumerate(s.kread(1, 0)): non[26 + 2*i].append(r)
        non[40].append(op(f"s_mov_b32 s{s.sKV}, {4*12288}"))
        non[41].append(op(f"s_mov_b32 s{s.sOFF}, {3*12288}"))
        for g in range(48):
            seq.append(s.mfA(0, g, zeroC=True)); seq += non[g]
        seq.append(op("s_nop 7"))
        seq += [op(t) for t in s.fix_body(0, True)]
        seq.append(wait(('K', 2), ('V', 0)))
        return seq

    def flag2(s):
        return vm(f"buffer_store_dword v{s.vFl}, v{s.vF0}, s[{s.SF2}:{s.SF2+3}], s{s.sF2W} offen sc1", ('FL',))

    def wslot3(s, d): return (98304 + (d % 6)*20480) if d % 6 < 3 else ((d % 6) - 3)*20480
    def dmas3(s, d):
        o = []
        for t in range(5):
            pre = [op(f"s_add_u32 m0, s{s.sM}, {s.wslot3(d) + (4096 if t == 4 else 0)}")] if t in (0, 4) else []
            vo, off = (s.vX, 1024*t) if t < 4 else (s.vX4, 0)
            o.append((pre, vm(f"buffer_load_dwordx4 v{vo}, s[{s.SWP}:{s.SWP+3}], s{s.sB} offen offset:{off} lds", ('W3', d))))
        return o
    def advB(s, d):
        if d == 5: return [op(f"s_mul_i32 s{s.sB}, s{s.sKQ}, {48*40960}"), op(f"s_add_u32 s{s.sB}, s{s.sB}, {48*40960}")]
        return [op(f"s_add_u32 s{s.sB}, s{s.sB}, 81920")]
    def advA(s, d):
        if d == 5: return [op(f"s_mul_i32 s{s.sA}, s{s.sKQ}, {48*4096}"), op(f"s_add_u32 s{s.sA}, s{s.sA}, {48*4096}")]
        return [op(f"s_add_u32 s{s.sA}, s{s.sA}, 8192")]
    def bloads(s, d):
        o = []
        for kst in range(2):
            for q in range(2):
                o.append(vm(f"buffer_load_dwordx4 {vr(s.BSL[d % 6] + 8*kst + 4*q, 4)}, v{s.vX4 if kst else s.vX}, s[{s.SA2I}:{s.SA2I+3}], s{s.sA} offen offset:{1024*q} sc1", ('B', d)))
        return o
    def areads(s, d, nt):
        o = []
        for kst in range(2):
            off = s.wslot3(d) + kst*10240 + nt*1024
            base = s.vX
            if off >= 98304: off -= 98304; base = s.vLa
            o.append(ds(f"ds_read_b128 {vr(s.vA + 8*((d*10 + nt) % 4) + 4*kst, 4)}, v{base} offset:{off}", ('A', d, nt)))
        return o

    def step(s, u, last=False, site=None):
        non = [[] for _ in range(96)]; val = [[] for _ in range(96)]
        tail = []
        if not last:
            non[0].append(op("s_barrier"))
            k1 = s.kread(u+1, 1)
            for i, g in enumerate((1, 3, 5, 7, 9, 14)):
                non[g].append(k1[i])
            if u <= 60:
                place(non, s.dma_kv('K', u+4, f"s{s.sKV}") + s.dma_kv('V', u+3, f"s{s.sOFF}"), (2, 4, 6, 8, 15, 21))
                non[22].append(op(f"s_add_u32 s{s.sKV}, s{s.sKV}, 12288"))
                non[24].append(op(f"s_add_u32 s{s.sOFF}, s{s.sOFF}, 12288"))
            non[23].append(wait(('KF', u+1, 1)))
            if u + 2 < 64:
                for r, g in zip(s.kread(u+2, 0), (26, 27, 32, 33, 38, 39)): non[g].append(r)
            if 1 <= u <= 60:
                ph = (u - 1) % 4
                if ph in (0, 2):
                    non[86].append(vm(f"buffer_store_dwordx4 {vr(s.vNEG,4)}, v{s.vX}, s[{s.SCL}:{s.SCL+3}], s{s.sCL} offen sc1", ('CL',)))
                    non[88].append(op(f"s_add_u32 s{s.sCL}, s{s.sCL}, 1024"))
                if ph == 1:
                    non[84].append(op(f"s_sub_u32 s40, s{s.sCNT}, 3")); non[85].append(op("s_lshl_b32 s40, s40, 12"))
                    non[85].append(op(f"s_add_u32 s40, s40, s{s.sFI}"))
                    non[86].append(vm(f"buffer_store_byte v{s.vFl}, v{s.vF0}, s[{s.SFL}:{s.SFL+3}], s40 offen sc1", ('FL',)))
            if u <= 60 and u % 4 == 0:
                non[85].append(op("s_mov_b32 m0, s59"))
                non[86].append(vm(f"buffer_load_dwordx4 v{s.vPs}, s[{s.SPS}:{s.SPS+3}], s{s.sPK} offen lds", ('PK', u)))
                non[88].append(op(f"s_add_u32 s{s.sPK}, s{s.sPK}, 32"))
                non[89].append(op(f"s_cmp_eq_u32 s{s.sPK}, 320")); non[89].append(op(f"s_cselect_b32 s{s.sPK}, 0x40000000, s{s.sPK}"))
            if u <= 60 and u % 4 == 2:
                non[87].append(wait(('PK', u-2), vmfix=13))
                non[88].append(ds(f"ds_read_b64_tr_b16 {vr(s.vPK,2)}, v{s.vPa}", ('PR', u)))
                non[89].append(ds(f"ds_read_b64_tr_b16 {vr(s.vPK+2,2)}, v{s.vPa} offset:512", ('PR', u)))
            if u <= 60 and u % 4 == 3:
                non[90].append(vm(f"buffer_store_dwordx4 {vr(s.vPK,4)}, v{s.vX}, s[{s.SPD}:{s.SPD+3}], s{s.sPD} offen sc1", ('CL',)))
                non[92].append(op(f"s_add_u32 s{s.sPD}, s{s.sPD}, 1024"))
            if u <= 60: non[95].append(wait(('K', u+3), ('V', u+1), vmfix=(11 if u % 4 == 3 else 10)))
            elif u == 61: non[95].append(wait(('V', 62), ('F1',)))
            else: non[95].append(wait(('V', 63), ('K', 64)))
            if u == 61:
                non[1].append(op(f"s_mul_i32 s{s.sM}, s{s.sW}, 5120"))
                non[3].append(op(f"s_mul_i32 s{s.sB}, s{s.sKQ}, {12*40960}"))
                non[5].append(op(f"s_mul_i32 s{s.sA}, s{s.sKQ}, {12*4096}"))
                val[2].append(op(f"v_lshrrev_b32 v{s.vTmp+5}, 2, v{s.vX}"))
                non[6].append(vm(f"buffer_load_dword v{s.vTmp+6}, v{s.vTmp+5}, s[{s.SFL}:{s.SFL+3}], 0 offen sc1", ('F1',)))
                x = s.vTmp + 6
                tail = ["K2_f1chk:", f"v_cmp_ne_u32 vcc, 0x01010101, v{x}", "s_cbranch_vccnz K2_f1slow", "K2_f1ok:"]
            if u == 62:
                for d, gl in ((0, (2, 4, 6, 8, 15)), (1, (21, 84, 85, 86, 88)), (2, (89, 90, 92, 93, 94))):
                    place(non, s.dmas3(d), gl)
                    non[gl[-1] + 1] = s.advB(d) + non[gl[-1] + 1]
        for dt in range(12):
            r = s.vread(u, dt)
            non[36 + 4*dt].append(r[0]); non[37 + 4*dt].append(r[1])
            non[47 + 4*dt].append(wait(('VF', u, dt)))
        if last:
            fg = [g for g in range(50, 96) if not any(i.kind == 'ds' for i in non[g]) and g % 4 == 2] + [84, 85, 88, 89, 92, 93]
            fg.sort()
            k = 0
            for d in range(3):
                for x in s.bloads(d): non[fg[k]].append(x); k += 1
                non[fg[k-1] + 1] += s.advA(d)
            place(non, s.dmas3(3), fg[k:k+5]); non[95] += s.advB(3)
        ops = []
        def add(t, cost, early, deps=()):
            ops.append([t, cost, early, list(deps), None]); return len(ops) - 1
        g0 = 48 if last else 0
        for qt in range(4):
            add(f"v_add_f32 v{s.vl+qt}, v{s.vl+qt}, v{s.vt+qt}", 1, g0)
        if not last:
            nb = (u + 1) % 2
            lastadd = {}
            prevT = {}
            n = 0
            for kt in range(2):
                for qt in range(4):
                    ready = kt*24 + qt*6 + 5 + 5
                    T = s.vT + 4*(n % 4); n += 1
                    b = s.S(kt, qt)
                    e = [add(f"v_exp_f32 v{T+r}, v{b+r}", 2, ready, prevT.get(T+r, [])) for r in range(4)]
                    t = s.vt + qt
                    if kt == 0:
                        a0 = add(f"v_add_f32 v{t}, v{T}, v{T+1}", 1, ready, [e[0], e[1], qt]); al = [a0, a0]
                    else:
                        a0 = add(f"v_add_f32 v{t}, v{t}, v{T}", 1, ready, [e[0], lastadd[qt]])
                        a1 = add(f"v_add_f32 v{t}, v{t}, v{T+1}", 1, ready, [e[1], a0]); al = [a0, a1]
                    c0 = add(f"v_cvt_pk_bf16_f32 v{s.P(nb,qt)+2*kt}, v{T}, v{T+1}", 1, ready, [e[0], e[1]])
                    a2 = add(f"v_add_f32 v{t}, v{t}, v{T+2}", 1, ready, [e[2], al[1]])
                    a3 = add(f"v_add_f32 v{t}, v{t}, v{T+3}", 1, ready, [e[3], a2])
                    c1 = add(f"v_cvt_pk_bf16_f32 v{s.P(nb,qt)+2*kt+1}, v{T+2}, v{T+3}", 1, ready, [e[2], e[3]])
                    lastadd[qt] = a3
                    prevT[T] = [al[0], c0]; prevT[T+1] = [al[1], c0]; prevT[T+2] = [a2, c1]; prevT[T+3] = [a3, c1]
            x = s.vTmp
            m0 = add(f"v_max3_f32 v{x}, v{s.vt}, v{s.vt+1}, v{s.vt+2}", 1, 0, [lastadd[0], lastadd[1], lastadd[2]])
            m1 = add(f"v_max_f32 v{x}, v{x}, v{s.vt+3}", 1, 0, [m0, lastadd[3]])
            add(f"v_cmp_nge_f32 vcc, s{s.sTHR}, v{x}", 1, 0, [m1])
        done = 0
        for g in range(g0, 96):
            cost = sum(3 if i.kind == 'vm' else 2 if i.kind == 'ds' else 1 for i in non[g])
            cap = min(2, 3 - cost) - len(val[g])
            def ready_(o):
                if o[4] is not None or o[2] > g: return False
                for d in o[3]:
                    dg = ops[d][4]
                    if dg is None or (ops[d][1] == 2 and dg >= g): return False
                return True
            while cap > 0:
                cand = [o for o in ops if o[1] <= cap and ready_(o)]
                if not cand: break
                ex = [o for o in cand if o[1] == 2]
                o = ex[0] if ex else cand[0]
                o[4] = g; val[g].append(op(o[0])); cap -= o[1]; done += 1
        assert done == len(ops), (done, len(ops))
        s.lastvalu = max(getattr(s, 'lastvalu', 0), max(o[4] for o in ops))
        seq = []
        if last:
            seq += [op("s_barrier")]
            for g in range(36, 48): seq += non[g]
        for g in range(g0, 96):
            seq.append(s.mfA(u+1, g) if g < 48 else s.mfC(u, g - 48, zeroC=(u == 0)))
            seq += non[g] + val[g]
        if not last:
            seq.append(I(f"s_cbranch_vccnz K2_rare_{site}", 'br'))
            seq.append(I(f"K2_ret_{site}:", 'label'))
        seq += [op(t) for t in tail]
        return seq

    def epilogue(s):
        seq = []; A = lambda t: seq.append(op(t))
        x = s.vTmp
        for qt in range(4):
            l = s.vl + qt
            for sw in ('32', '16'):
                A(f"v_mov_b32 v{x}, v{l}"); A("s_nop 1")
                A(f"v_permlane{sw}_swap_b32 v{x}, v{l}")
                A(f"v_add_f32 v{l}, v{l}, v{x}")
            A(f"v_rcp_f32 v{s.vC + 2*qt}, v{l}")
            A("s_nop 0")
            A(f"v_mov_b32 v{s.vC + 2*qt + 1}, v{s.vC + 2*qt}")
        A(f"s_mul_i32 s40, s{s.sHD}, {6*4096}"); A(f"s_add_u32 s40, s40, {48*4096}")
        n = 0
        for sp in range(6):
            for qt in range(4):
                B = s.vS + 8*(n % 4); D = s.vP + 4*(n % 8); n += 1
                for h in range(2):
                    o = s.O(2*sp + h, qt)
                    for r in range(4): A(f"v_accvgpr_read_b32 v{B+4*h+r}, a{o+r}")
                for r in range(4): A(f"v_pk_mul_f32 {vr(B+2*r,2)}, {vr(B+2*r,2)}, {vr(s.vC+2*qt,2)}")
                for r in range(4): A(f"v_cvt_pk_bf16_f32 v{D+r}, v{B+2*r}, v{B+2*r+1}")
                seq.append(vm(f"buffer_store_dwordx4 {vr(D,4)}, v{s.vX}, s[{s.SA2}:{s.SA2+3}], s40 offen offset:{1024*qt} sc1", ('OST',)))
            A("s_add_u32 s40, s40, 4096")
        for d in (3, 4, 5): seq += s.bloads(d) + s.advA(d)
        for p_, d_ in s.dmas3(4)[:3]: seq += p_ + [op("s_nop 0")] * bool(p_) + [d_]
        A(f"v_mov_b32 v{s.vFl}, 2")
        seq += [wait(('W3', 0), ('B', 0)), op("s_barrier")]
        for nt in range(3): seq += s.areads(0, nt)
        seq.append(wait(('A', 0, 0)))
        return seq

    def publish(s, accb, p, extra=()):
        seq = [op(f"s_mul_i32 s40, s{s.sW}, 81920"), op(f"s_mul_i32 s41, s{s.sKQ}, 20480"), op("s_add_u32 s40, s40, s41")]
        if p: seq.append(op("s_add_u32 s40, s40, 10240"))
        seq.append(op("s_nop 4"))
        extra = list(extra)
        for u in range(10):
            T = 32 + 12*(u % 4)
            for r in range(8): seq.append(op(f"v_accvgpr_read_b32 v{T+r}, a{accb + u*8 + r}"))
            for r in range(4): seq.append(op(f"v_cvt_pk_bf16_f32 v{T+8+r}, v{T+2*r}, v{T+2*r+1}"))
            seq += extra[:2]; extra = extra[2:]
            seq.append(vm(f"buffer_store_dwordx4 {vr(T+8,4)}, v{(s.vX, s.vX4, s.vX8)[u//4]}, s[{s.SXB}:{s.SXB+3}], s40 offen offset:{1024*(u%4)} sc1", ('PUB', p)))
        assert not extra
        return seq

    def p3(s, W):
        ND = 30
        non = [[] for _ in range(ND*40 + 40)]
        for d in range(ND + 1):
            for nt in range(10):
                G = d*40 + nt*4
                if G >= 12:
                    r = s.areads(d, nt); non[G-12].append(r[0]); non[G-11].append(r[1])
                if G > 0:
                    non[G-1].append(wait(('A', d, nt)))
            if d >= 1:
                need = [('W3', d)] + ([('B', d)] if d != 6 else []) + ([('OST',)] if d == 3 else [])
                non[d*40 - 14].append(wait(*need, vmfix=(27 if d >= 7 else None))); non[d*40 - 13].insert(0, op("s_barrier"))
            dl = s.dmas3(d + 4)
            for (p_, x), lg in zip(dl, (-10, -6, -2, 2, 6)):
                if d*40 + lg < 0: continue
                non[d*40 + lg - 3] += p_; non[d*40 + lg].append(x)
            non[d*40 + 7] += s.advB(d + 4)
            if d >= 5:
                dd = d + 5 if d >= 6 else 6
                for x, lg in zip(s.bloads(dd), (10, 14, 18, 22)): non[d*40 + lg].append(x)
                non[d*40 + 23] += s.advA(dd)
        non[3*40 - 10 + 20].append(s.flag2())
        non[4*40 + 10].append(vm(f"buffer_load_dword v{s.vTmp+5}, v{s.vPo}, s[{s.SF2}:{s.SF2+3}], s{s.sPO} offen sc1", ('F2',)))
        its = []
        for d in range(ND):
            q = []
            accb = 80 if d < 6 else 0
            for g in range(40):
                nt, q2, kst = g // 4, (g % 4) // 2, g % 2
                a = ar(accb + (nt*2 + q2)*4, 4)
                c = '0' if (d == 0 and kst == 0) else a
                q.append(op(f"v_mfma_f32_16x16x32_bf16 {a}, {vr(s.vA + 8*((d*10 + nt) % 4) + 4*kst, 4)}, {vr(s.BSL[d % 6] + 8*kst + 4*q2, 4)}, {c}"))
                q += non[d*40 + g]
                if d < 5 and g % 4 == 3 and g < 32:
                    q += [op(f"v_accvgpr_write_b32 a{d*16 + (g//4)*2 + r}, 0") for r in range(2)]
            if d == 4:
                x = s.vTmp + 5
                q += [wait(('F2',)), op("K2_f2chk:"), op(f"v_cmp_ne_u32 vcc, 2, v{x}"),
                      op("s_cbranch_vccnz K2_f2slow"), op("K2_f2ok:")]
            if d == 5:
                ex = []
                for dd in (7, 8, 9, 10): ex += s.bloads(dd) + s.advA(dd)
                q += s.publish(80, 1, ex) + [wait(('B', 6))]
            its.append([i.t for i in W.resolve(q)])
        for d in range(12, ND):
            assert its[d] == its[d - 6], (d, [x for x in zip(its[d], its[d-6]) if x[0] != x[1]])
        E = [i.t for i in W.resolve(s.publish(0, 0))]
        A = E.append
        vo = s.vTmp
        E += srd(s.SX, 76, 77, None, XN_SIZE) + srd(s.SOUT, 82, 83, None, XN_SIZE)
        A(f"s_lshl_b32 s40, s{s.sMT}, 7"); A(f"s_lshl_b32 s41, s{s.sKQ}, 5"); A("s_add_u32 s40, s40, s41")
        A(f"v_lshrrev_b32 v{vo+1}, 4, v{s.vX}"); A(f"v_and_b32 v{vo}, 15, v{vo+1}"); A(f"v_add_u32 v{vo}, s40, v{vo}"); A(f"v_mul_u32_u24 v{vo}, 1280, v{vo}")
        A(f"v_lshrrev_b32 v{vo+1}, 4, v{vo+1}"); A(f"v_lshl_add_u32 v{vo}, v{vo+1}, 3, v{vo}")
        A(f"s_mul_i32 s40, s{s.sNG}, 320"); A(f"s_lshl_b32 s41, s{s.sW}, 5"); A("s_add_u32 s40, s40, s41")
        A(f"v_add_u32 v{vo}, s40, v{vo}"); A(f"v_add_u32 v{vo+1}, 20480, v{vo}")
        A(f"s_cmp_lt_u32 s{s.sW}, 2"); A("s_cselect_b32 s50, 0, 0x40000000")
        A("s_waitcnt vmcnt(10) lgkmcnt(0)")
        X = 80
        for i in range(3):
            for q2 in range(2):
                A(f"buffer_load_dwordx2 {vr(X + 4*i + 2*q2, 2)}, v{vo+q2}, s[{s.SX}:{s.SX+3}], {'0' if i < 2 else 's50'} offen offset:{128*i}")
        A(f"s_mul_i32 s42, s{s.sKQ}, 81920"); A(f"s_lshl_b32 s41, s{s.sW}, 10"); A("s_add_u32 s42, s42, s41")
        A(f"s_mov_b32 s51, {POLLMAX}")
        E += stamp(9)
        Pp = 96
        m = vo + 2
        A("K2_xpre:")
        A("s_mov_b32 s40, s42")
        for k in range(4):
            A(f"buffer_load_dword v{Pp+k}, v{s.vX4}, s[{s.SXB}:{s.SXB+3}], s40 offen sc1")
            A("s_add_u32 s40, s40, 20480")
        A("s_waitcnt vmcnt(0)")
        A(f"v_max_u32 v{m}, v{Pp}, v{Pp+1}"); A(f"v_max3_u32 v{m}, v{m}, v{Pp+2}, v{Pp+3}")
        A(f"v_cmp_eq_u32 vcc, -1, v{m}")
        A("s_sub_u32 s51, s51, 1")
        A("s_cbranch_vccz K2_xpoll")
        A("s_sleep 2")
        A("s_cmp_lg_u32 s51, 0"); A("s_cbranch_scc1 K2_xpre")
        A("K2_xpoll:")
        A("s_mov_b32 s40, s42")
        for k in range(8):
            A("s_add_u32 s43, s40, s50")
            for i in range(3):
                A(f"buffer_load_dwordx4 {vr(Pp + 32*i + 4*k, 4)}, v{(s.vX, s.vX4, s.vX8)[i]}, s[{s.SXB}:{s.SXB+3}], {'s40' if i < 2 else 's43'} offen sc1")
            A("s_add_u32 s40, s40, 10240")
        A("s_waitcnt vmcnt(0)")
        A(f"v_max_u32 v{m}, v{Pp}, v{Pp+1}"); A(f"v_max_u32 v{m+1}, v{Pp+2}, v{Pp+3}")
        for k in range(4, 96, 4):
            A(f"v_max3_u32 v{m}, v{m}, v{Pp+k}, v{Pp+k+1}"); A(f"v_max3_u32 v{m+1}, v{m+1}, v{Pp+k+2}, v{Pp+k+3}")
        A(f"v_max_u32 v{m}, v{m}, v{m+1}")
        A(f"v_cmp_eq_u32 vcc, -1, v{m}")
        A("s_cbranch_vccz K2_xok")
        A("s_cmp_eq_u32 s51, 0"); A("s_cbranch_scc1 K2_xok")
        A("s_sub_u32 s51, s51, 1"); A("s_branch K2_xpoll")
        A("K2_xok:")
        E += stamp(10)
        A(f"s_mov_b32 s41, {hx(f2u(-LOG2E))}"); A("s_mov_b32 s43, 0xffff0000")
        for i in range(3):
            b = Pp + 32*i; S_ = 0; F_ = 8; T_ = 16; X_ = 24
            if i == 1: S_, F_, T_, X_ = 32, 40, 48, 56
            for p, D_ in ((1, F_), (0, S_)):
                for src in range(4):
                    dst = D_ if src == 0 else T_
                    for r in range(4):
                        A(f"v_lshlrev_b32 v{dst+2*r}, 16, v{b+8*src+4*p+r}"); A(f"v_and_b32 v{dst+2*r+1}, s43, v{b+8*src+4*p+r}")
                    if src:
                        for e in range(4): A(f"v_pk_add_f32 {vr(D_+2*e,2)}, {vr(D_+2*e,2)}, {vr(T_+2*e,2)}")
                if p:
                    for e in range(8): A(f"v_mul_f32 v{X_+e}, s41, v{F_+e}")
                    for e in range(8): A(f"v_exp_f32 v{X_+e}, v{X_+e}")
            for e in range(8): A(f"v_add_f32 v{X_+e}, 1.0, v{X_+e}")
            for e in range(8): A(f"v_rcp_f32 v{X_+e}, v{X_+e}")
            for e in range(4): A(f"v_pk_mul_f32 {vr(S_+2*e,2)}, {vr(S_+2*e,2)}, {vr(F_+2*e,2)}")
            for r in range(4):
                A(f"v_lshlrev_b32 v{T_+2*r}, 16, v{X+4*i+r}"); A(f"v_and_b32 v{T_+2*r+1}, s43, v{X+4*i+r}")
            for e in range(8): A(f"v_fmac_f32 v{T_+e}, v{S_+e}, v{X_+e}")
            for r in range(4): A(f"v_cvt_pk_bf16_f32 v{F_+r}, v{T_+2*r}, v{T_+2*r+1}")
            for q2 in range(2):
                A(f"buffer_store_dwordx2 {vr(F_ + 2*q2, 2)}, v{vo+q2}, s[{s.SOUT}:{s.SOUT+3}], {'0' if i < 2 else 's50'} offen offset:{128*i}")
        return its, E

    def gen(s):
        L = s.setup()
        W = WaitState()
        txt = lambda seq: [i.t for i in W.resolve(seq)]
        pj = txt(s.proj())
        if STAMP:
            k = pj.index("s_barrier"); pj = pj[:k+1] + stamp(1) + pj[k+1:]
        pre = pj + stamp(2) + txt(s.conv()) + stamp(3) + txt(s.first()) + stamp(4)
        steps = {}
        LOOP0, NIT = 1, 15
        def site(u):
            if LOOP0 <= u < LOOP0 + 4*NIT: return f"L{(u-LOOP0)%4}"
            return f"P{u}"
        for u in range(64):
            steps[u] = txt(s.step(u, last=(u == 63), site=site(u)))
        for u in range(LOOP0 + 4, LOOP0 + 4*NIT):
            assert steps[u] == steps[u-4], f"step {u} differs"
        epi = txt(s.epilogue())
        its, E = s.p3(W)
        out = L[:2] + stamp(0) + L[2:] + pre + steps[0]
        out += [f"s_mov_b32 s{s.sCNT}, {NIT}", ".p2align 6", "K2_loop:"]
        for u in range(LOOP0, LOOP0 + 4): out += steps[u]
        out += [f"s_sub_u32 s{s.sCNT}, s{s.sCNT}, 1", f"s_cmp_lg_u32 s{s.sCNT}, 0", "s_cbranch_scc1 K2_loop"]
        for u in range(LOOP0 + 4*NIT, 64): out += steps[u]
        out += stamp(5) + ["s_nop 7"] + epi + stamp(6)
        for d in range(6): out += its[d]
        out += stamp(7) + [f"s_mov_b32 s{s.sCNT}, 4", ".p2align 6", "K2_loop3:"]
        for d in range(6, 12): out += its[d]
        out += [f"s_sub_u32 s{s.sCNT}, s{s.sCNT}, 1", f"s_cmp_lg_u32 s{s.sCNT}, 0", "s_cbranch_scc1 K2_loop3"]
        out += stamp(8) + E + stamp_out(12, 56, s.sW) + ["K2_done:", "s_endpgm"]
        x = s.vTmp + 5
        out += ["K2_f1slow:", f"s_add_u32 s{s.sCNT}, s{s.sCNT}, 1", f"s_cmp_gt_u32 s{s.sCNT}, {POLLMAX}", "s_cbranch_scc1 K2_f1ok", "s_sleep 2",
                f"buffer_load_dword v{x+1}, v{x}, s[{s.SFL}:{s.SFL+3}], 0 offen sc1", "s_waitcnt vmcnt(0)", "s_branch K2_f1chk"]
        out += ["K2_f2slow:", f"s_add_u32 s{s.sCNT}, s{s.sCNT}, 1", f"s_cmp_gt_u32 s{s.sCNT}, {2*POLLMAX}", "s_cbranch_scc1 K2_f2ok", "s_sleep 1",
                f"buffer_load_dword v{x}, v{s.vPo}, s[{s.SF2}:{s.SF2+3}], s{s.sPO} offen sc1", "s_waitcnt vmcnt(0)", "s_branch K2_f2chk"]
        sites = [(site(u), (u+1) % 2) for u in [0] + list(range(LOOP0, LOOP0+4)) + list(range(LOOP0+4*NIT, 63))]
        for st, par in sites:
            out += [f"K2_rare_{st}:", f"s_call_b64 s[{s.sRET}:{s.sRET+1}], K2_fix{par}", f"s_branch K2_ret_{st}"]
        errs = []
        for par in range(2):
            body = s.fix_body(par, False)
            out += [f"K2_fix{par}:"] + body + [f"s_setpc_b64 s[{s.sRET}:{s.sRET+1}]"]
            errs += check_hazards(steps[1+par][-40:] + body + steps[2+par][:40], f'fix{par}')
        out += ["K2_end:"]
        dyn = L + pre
        for u in range(64): dyn += steps[u]
        dyn += ["s_nop 7"] + epi
        for d in range(30): dyn += its[d]
        dyn += E
        errs += check_hazards(dyn, 'k2')
        return out, errs

HEADER = """; recurrent_scan__mha_block_cached__glu_gated_swiglu__prompt : LN + (cached-KV attention, SwiGLU) + gated residual
; @launch kernel=prep_kernel grid=(128,1,1) block=(256,1,1) lds=0
; @launch kernel=attn_kernel grid=(256,1,1) block=(256,1,1) lds=163840
.amdgcn_target "amdgcn-amd-amdhsa--gfx950"
"""
def fmt(L):
    return "".join((l if l.endswith(':') else "    " + l) + "\n" for l in L)

def main(path):
    k1, e1 = gen_k1()
    k2o = K2(); k2, e2 = k2o.gen()
    errs = e1 + e2
    for e in sorted(set(errs))[:40]: print("HAZARD", e)
    s = HEADER
    s += khead("prep_kernel") + fmt(k1)
    s += khead("attn_kernel") + fmt(k2)
    s += kdesc("prep_kernel", 112, 40, 112) + kdesc("attn_kernel", 512, 96, 256)
    open(path, 'w').write(s)
    print("written", path, len(s), "bytes; lastvalu gap", k2o.lastvalu, "; hazards", len(errs))

if __name__ == '__main__':
    if len(sys.argv) > 2 and sys.argv[2] == 'stamp': STAMP = True
    EXP = set(sys.argv[3:])
    main(sys.argv[1] if len(sys.argv) > 1 else 'recurrent_scan__mha_block_cached__glu_gated_swiglu__prompt.s')
```
